```python
import torch

def _softmax(x, axis=-1):
    return torch.softmax(x, dim=axis)
def _gelu(x):
    return torch.nn.functional.gelu(x, approximate="tanh")
def _silu(x):
    return torch.nn.functional.silu(x)
def _sigmoid(x):
    return torch.sigmoid(x)
def _layernorm(x, axis=-1, eps=1e-5):
    m = x.mean(dim=axis, keepdim=True)
    v = x.var(dim=axis, keepdim=True, unbiased=False)
    return (x - m) / torch.sqrt(v + eps)
def _scatter_add(tgt, idx, src, axis=0):
    return tgt.clone().index_add_(axis, idx, src)
def _segment_sum(src, seg, n):
    out = torch.zeros((n,) + src.shape[1:], dtype=src.dtype)
    return out.index_add_(0, seg, src)
def _pad(x, pw):
    flat = tuple(v for pair in reversed(pw) for v in pair)
    return torch.nn.functional.pad(x, flat)

kernel_name = 'concat_heads__mha_block_cached__gqa_block_cached__near_ridge'

def setup_inputs():

    _w = (lambda a: (lambda t: t.to(torch.bfloat16) if t.is_floating_point() else t)(torch.as_tensor(a)))
    def _A_setup():
        B, Sq, D = 16, 48, 640
        H, Sk, Dh = 32, 48, 128
        return {
            "x": _w((lambda *s: torch.randn(*s, dtype=torch.bfloat16) * 0.8)(B, Sq, D)),
            "k_cache": _w((lambda *s: torch.randn(*s, dtype=torch.bfloat16) * 0.8)(B, H, Sk, Dh)),
            "v_cache": _w((lambda *s: torch.randn(*s, dtype=torch.bfloat16) * 0.05)(B, H, Sk, Dh)),
            "wq": _w((lambda *s: torch.randn(*s, dtype=torch.bfloat16) * 0.8)(D, H * Dh) * (D ** -0.5)),
            "wo": _w((lambda *s: torch.randn(*s, dtype=torch.bfloat16) * 0.05)(H * Dh, D) * ((H * Dh) ** -0.5)),
        }
    _A_in = _A_setup()

    def _B_setup():
        B, Sq, D = 16, 48, 640
        Hq, Hkv, Sk, Dh = 32, 32, 48, 128
        assert Hq % Hkv == 0, (Hq, Hkv)
        return {
            "x": _w((lambda *s: torch.randn(*s, dtype=torch.bfloat16) * 0.8)(B, Sq, D)),
            "k_cache": _w((lambda *s: torch.randn(*s, dtype=torch.bfloat16) * 0.8)(B, Hkv, Sk, Dh)),
            "v_cache": _w((lambda *s: torch.randn(*s, dtype=torch.bfloat16) * 0.05)(B, Hkv, Sk, Dh)),
            "wq": _w((lambda *s: torch.randn(*s, dtype=torch.bfloat16) * 0.8)(D, Hq * Dh) * (D ** -0.5)),
            "wo": _w((lambda *s: torch.randn(*s, dtype=torch.bfloat16) * 0.05)(Hq * Dh, D) * ((Hq * Dh) ** -0.5)),
        }
    _B_in = _B_setup()

    return {
        "A_x": _A_in["x"],
        "A_k_cache": _A_in["k_cache"],
        "A_v_cache": _A_in["v_cache"],
        "A_wq": _A_in["wq"],
        "A_wo": _A_in["wo"],
        "B_x": _B_in["x"],
        "B_k_cache": _B_in["k_cache"],
        "B_v_cache": _B_in["v_cache"],
        "B_wq": _B_in["wq"],
        "B_wo": _B_in["wo"],
    }

def reference(A_x, A_k_cache, A_v_cache, A_wq, A_wo, B_x, B_k_cache, B_v_cache, B_wq, B_wo):
    def _A_ref(x, k_cache, v_cache, wq, wo):
        B, Sq, D = x.shape
        H, Dh = 32, 128
        q = (lambda x, *d: x.permute(*d))((x @ wq).reshape(B, Sq, H, Dh), 0, 2, 1, 3)
        scores = torch.einsum("bhqd,bhkd->bhqk", q, k_cache) * (Dh ** -0.5)
        p = _softmax(scores, axis=-1)
        o = torch.einsum("bhqk,bhkd->bhqd", p, v_cache)
        return (lambda x, *d: x.permute(*d))(o, 0, 2, 1, 3).reshape(B, Sq, H * Dh) @ wo

    def _B_ref(x, k_cache, v_cache, wq, wo):
        B, Sq, D = x.shape
        Hq, Dh = 32, 128
        Hkv = k_cache.shape[1]
        rep = Hq // Hkv
        q = (lambda x, *d: x.permute(*d))((x @ wq).reshape(B, Sq, Hq, Dh), 0, 2, 1, 3)
        k = (lambda x, n, axis: torch.repeat_interleave(x, n, dim=axis))(k_cache, rep, axis=1)
        v = (lambda x, n, axis: torch.repeat_interleave(x, n, dim=axis))(v_cache, rep, axis=1)
        scores = torch.einsum("bhqd,bhkd->bhqk", q, k) * (Dh ** -0.5)
        p = _softmax(scores, axis=-1)
        o = torch.einsum("bhqk,bhkd->bhqd", p, v)
        return (lambda x, *d: x.permute(*d))(o, 0, 2, 1, 3).reshape(B, Sq, Hq * Dh) @ wo

    a = _A_ref(A_x, A_k_cache, A_v_cache, A_wq, A_wo)
    b = _B_ref(B_x, B_k_cache, B_v_cache, B_wq, B_wo)
    return torch.concatenate([a, b], axis=-1)
```

```python
import re

REG_RE = re.compile(r'^(-?)(?:abs\()?([vas])(?:\[(\d+):(\d+)\]|(\d+))\)?$')

def parse_reg(tok):
    tok = tok.strip()
    if tok in ('vcc', 'exec', 'm0', 'vcc_lo', 'vcc_hi', 'exec_lo', 'exec_hi'):
        return [('x', tok.split('_')[0])]
    m = REG_RE.match(tok)
    if not m:
        return []
    k = m.group(2)
    if m.group(3) is not None:
        return [(k, i) for i in range(int(m.group(3)), int(m.group(4)) + 1)]
    return [(k, int(m.group(5)))]

TRANS = ('v_exp_f32', 'v_log_f32', 'v_rcp_f32', 'v_rsq_f32', 'v_sqrt_f32', 'v_sin_f32', 'v_cos_f32')

class Ins:
    __slots__ = ('text', 'op', 'w', 'r', 'kind', 'srcc', 'ab', 'passes', 'tag', 'states', 'store_data', 'lds_dma')
    def __init__(self, text):
        self.text = text
        self.tag = None
        t = text.split(';')[0].strip()
        parts = t.split(None, 1)
        self.op = parts[0]
        rest = parts[1] if len(parts) > 1 else ''
        ops = [o.strip() for o in rest.split(',')] if rest else []
        mods = ''
        if ops:
            last = ops[-1].split(None, 1)
            ops[-1] = last[0]
            mods = last[1] if len(last) > 1 else ''
        op = self.op
        self.w = []; self.r = []; self.srcc = []; self.ab = []; self.passes = 0
        self.states = 1; self.store_data = []; self.lds_dma = False
        P = [parse_reg(o) for o in ops]
        if op.startswith('v_mfma'):
            self.kind = 'mfma'
            self.w = P[0]; self.ab = P[1] + P[2]; self.srcc = P[3]; self.r = self.ab + self.srcc
            self.passes = 8 if '32x32' in op else 4
        elif op.startswith('v_'):
            self.kind = 'valu'
            if op.startswith('v_cmp'):
                self.w = P[0]; self.r = sum(P[1:], [])
            elif op.startswith('v_permlane') and 'swap' in op:
                self.w = P[0] + P[1]; self.r = P[0] + P[1]
            elif op.startswith('v_add_co') or op.startswith('v_sub_co') or op.startswith('v_addc_co'):
                self.w = P[0] + P[1]; self.r = sum(P[2:], [])
            else:
                self.w = P[0]; self.r = sum(P[1:], [])
                if op.startswith('v_fmac') or op.startswith('v_pk_fmac') or op.startswith('v_writelane'):
                    self.r = self.r + P[0]
        elif op.startswith('ds_read') or op.startswith('ds_bpermute') or op.startswith('ds_swizzle'):
            self.kind = 'ds'; self.w = P[0]; self.r = sum(P[1:], [])
        elif op.startswith('ds_write'):
            self.kind = 'ds'; self.r = sum(P, [])
        elif op.startswith('buffer_load') or op.startswith('global_load'):
            self.kind = 'vmem'
            if 'lds' in mods.split() or 'lds' in op:
                self.lds_dma = True; self.r = sum(P, []) + [('x', 'm0')]
            else:
                self.w = P[0]; self.r = sum(P[1:], [])
        elif op.startswith('buffer_store') or op.startswith('buffer_atomic'):
            self.kind = 'vmem'; self.r = sum(P, [])
            if 'sc0' in mods.split() and 'atomic' in op: self.w = P[0]
            if len(P[0]) >= 3: self.store_data = P[0]
        elif op.startswith('global_store') or op.startswith('global_atomic'):
            self.kind = 'vmem'; self.r = sum(P, [])
            if len(P[1]) >= 3: self.store_data = P[1]
        elif op.startswith('buffer_inv') or op.startswith('buffer_wbl2'):
            self.kind = 'vmem'
        elif op.startswith('s_load') or op.startswith('s_memtime') or op.startswith('s_memrealtime') or op.startswith('s_buffer_load'):
            self.kind = 'smem'; self.w = P[0]; self.r = sum(P[1:], [])
        elif op == 's_nop':
            self.kind = 'nop'; self.states = int(ops[0], 0) + 1
        elif op in ('s_waitcnt', 's_barrier', 's_endpgm', 's_setprio', 's_sleep') or op.startswith('s_cbranch') or op == 's_branch':
            self.kind = 'ctl'
        elif op == 's_getpc_b64':
            self.kind = 'salu'; self.w = P[0]
        elif op.startswith('s_cmp') or op.startswith('s_bitcmp'):
            self.kind = 'salu'; self.r = sum(P, [])
        elif op.startswith('s_'):
            self.kind = 'salu'; self.w = P[0]; self.r = sum(P[1:], [])
        elif op.endswith(':'):
            self.kind = 'label'; self.states = 0
        else:
            raise ValueError('unknown instruction: ' + text)

class Prog:
    def __init__(self):
        self.ins = []
        self.vm_out = []
        self.lg_out = []
        self.auto_wait = True
    def _wait(self, vm=None, lg=None):
        parts = []
        if vm is not None:
            vm = min(vm, 63)
            if len(self.vm_out) > vm:
                parts.append(f'vmcnt({vm})'); self.vm_out = self.vm_out[len(self.vm_out) - vm:] if vm else []
        if lg is not None:
            lg = min(lg, 15)
            if len(self.lg_out) > lg:
                parts.append(f'lgkmcnt({lg})'); self.lg_out = self.lg_out[len(self.lg_out) - lg:] if lg else []
        if parts:
            self.ins.append(Ins('s_waitcnt ' + ' '.join(parts)))
    def wait_tag(self, tag):
        idx = [i for i, o in enumerate(self.vm_out) if o.tag == tag]
        if idx:
            self._wait(vm=len(self.vm_out) - 1 - idx[-1])
    def wait_vm(self, n=0): self._wait(vm=n)
    def wait_lg(self, n=0): self._wait(lg=n)
    def raw(self, text):
        self.ins.append(Ins(text))
    def __call__(self, text, tag=None):
        for line in text.strip().split('\n'):
            line = line.strip()
            if not line or line.startswith(';'): continue
            self._emit(line, tag)
    def _emit(self, text, tag):
        I = Ins(text); I.tag = tag
        if self.auto_wait:
            touched = set(I.r) | set(I.w)
            need_vm = None; need_lg = None
            for i, o in enumerate(self.vm_out):
                if o.w and touched & set(o.w): need_vm = len(self.vm_out) - 1 - i
            for i, o in enumerate(self.lg_out):
                if o.w and touched & set(o.w):
                    need_lg = 0 if o.kind == 'smem' else len(self.lg_out) - 1 - i
            if need_lg is not None and any(o.kind == 'smem' for o in self.lg_out): need_lg = 0
            self._wait(vm=need_vm, lg=need_lg)
        if I.op == 's_waitcnt':
            m = re.search(r'vmcnt\((\d+)\)', text)
            if m:
                n = int(m.group(1)); self.vm_out = self.vm_out[len(self.vm_out) - n:] if n and len(self.vm_out) > n else ([] if n == 0 else self.vm_out)
            m = re.search(r'lgkmcnt\((\d+)\)', text)
            if m:
                n = int(m.group(1)); self.lg_out = self.lg_out[len(self.lg_out) - n:] if n and len(self.lg_out) > n else ([] if n == 0 else self.lg_out)
        self.ins.append(I)
        if I.kind == 'vmem': self.vm_out.append(I)
        if I.kind in ('ds', 'smem'): self.lg_out.append(I)
    def finalize(self):
        out = []
        def need(prod, cons):
            n = 0
            pw = set(prod.w); cr = set(cons.r); cw = set(cons.w)
            if prod.kind == 'valu':
                vw = {x for x in pw if x[0] in 'va'}
                sw = {x for x in pw if x[0] in 'sx'}
                if cons.kind == 'mfma' and vw & cr: n = max(n, 2)
                if cons.kind == 'valu':
                    if prod.op in TRANS and cons.op not in TRANS and vw & (cr | cw): n = max(n, 1)
                    if cons.op.startswith('v_permlane') and vw & cr: n = max(n, 2)
                    if (cons.op.startswith('v_readfirstlane') or cons.op.startswith('v_readlane')) and vw & cr: n = max(n, 1)
                    if 'dpp' in cons.text or 'row_' in cons.text or 'quad_perm' in cons.text:
                        if vw & cr: n = max(n, 2)
                    if sw & cr: n = max(n, 4 if cons.op.startswith(('v_readlane', 'v_writelane')) else 2)
                    if cons.op.startswith('v_cndmask') and ('x', 'vcc') in sw and len(cons.text.split(',')) < 4: n = max(n, 2)
                    if prod.op.startswith('v_cvt_pk') and vw & (cr | cw): n = max(n, 0)
                if cons.kind == 'vmem' and sw & cr: n = max(n, 5)
                if cons.kind in ('salu', 'smem') and sw & cr: n = max(n, 1)
                if ('x', 'exec') in pw: n = max(n, 5)
            if prod.kind == 'mfma':
                big = {4: 8, 8: 12}[prod.passes]; mid = {4: 6, 8: 10}[prod.passes]; war = {4: 3, 8: 7}[prod.passes]
                if cons.kind == 'mfma':
                    if pw & set(cons.ab): n = max(n, big)
                    if pw & set(cons.srcc):
                        if not (list(prod.w) == list(cons.srcc) and prod.op == cons.op): n = max(n, mid)
                    elif pw & cw: n = max(n, mid)
                elif cons.kind in ('valu', 'vmem', 'ds'):
                    if pw & (cr | cw): n = max(n, big)
                    if cons.kind == 'valu' and set(prod.srcc) & cw: n = max(n, war)
            if prod.kind == 'salu':
                if ('x', 'm0') in pw and cons.lds_dma: n = max(n, 1)
            if prod.kind == 'vmem' and prod.store_data:
                if set(prod.store_data) & cw: n = max(n, 2)
            return n
        for I in self.ins:
            if I.kind == 'label':
                out.append(I); continue
            dist = 0; req = 0
            for p in reversed(out):
                if dist >= 20: break
                if p.kind == 'label': continue
                k = need(p, I)
                if k > dist: req = max(req, k - dist)
                dist += p.states
            while req > 0:
                k = min(req, 16)
                out.append(Ins(f's_nop {k-1}')); req -= k
            out.append(I)
        self.ins = out
    def text(self):
        return '\n'.join(('' if i.kind == 'label' else '    ') + i.text for i in self.ins) + '\n'

def interleave(p, main, side, ratio=1, start=0):
    si = 0
    def do(x):
        if callable(x): x()
        else: p(x)
    for i, m in enumerate(main):
        do(m)
        if i >= start:
            for _ in range(ratio):
                if si < len(side):
                    do(side[si]); si += 1
    while si < len(side):
        do(side[si]); si += 1
```

```python
import sys, math
from asmlib import *
NAME = "concat_heads__mha_block_cached__gqa_block_cached__near_ridge"
WS_O = 0
WS_P = 16 << 20
SCALE_LOG2E = (128 ** -0.5) * math.log2(math.e)
import struct
def f32bits(x): return struct.unpack('<I', struct.pack('<f', x))[0]

def vr(b, n=4): return f"v[{b}:{b+n-1}]"
def ar(b, n=4): return f"a[{b}:{b+n-1}]"

def load_ptrs(p):
    p("""
    s_load_dwordx16 s[16:31], s[0:1], 0
    s_load_dwordx4 s[32:35], s[0:1], 64
    s_load_dwordx2 s[36:37], s[0:1], 80
    s_load_dwordx2 s[38:39], s[0:1], 96
    """)

def srd(p, d, lo, hi, size):
    p(f"""
    s_mov_b32 s{d}, s{lo}
    s_mov_b32 s{d+1}, s{hi}
    s_mov_b32 s{d+2}, {size}
    s_mov_b32 s{d+3}, 0x20000
    """)

def srd_sel(p, d, a, b, size):
    p(f"""
    s_cselect_b32 s{d}, s{a}, s{b}
    s_cselect_b32 s{d+1}, s{a+1}, s{b+1}
    s_mov_b32 s{d+2}, {size}
    s_mov_b32 s{d+3}, 0x20000
    """)

def k1():
    p = Prog()
    p("s_cmp_ge_u32 s2, 256")
    p("s_cbranch_scc1 L_k1_end")
    load_ptrs(p)
    V_LANE, V_G, V_I16, V_RR, V_CC, V_F, V_T0, V_T1 = 1, 2, 3, 4, 5, 6, 7, 8
    V_DA, V_DB, V_VA, V_VB, V_K, V_ST = 9, 10, 11, 12, 13, 14
    V_X = 15
    V_TR = 18
    V_TV = 26
    FR = 36
    ACC = 100
    KF = 196
    TMP = 244
    p(f"""
    v_and_b32 v{V_LANE}, 63, v0
    v_lshrrev_b32 v{V_T0}, 6, v0
    v_lshrrev_b32 v{V_G}, 4, v{V_LANE}
    v_readfirstlane_b32 s3, v{V_T0}
    v_and_b32 v{V_I16}, 15, v0
    v_bfe_u32 v{V_RR}, v0, 2, 2
    v_and_b32 v{V_CC}, 3, v0
    s_and_b32 s4, s2, 7
    s_lshr_b32 s5, s2, 3
    s_lshr_b32 s6, s4, 2
    s_and_b32 s7, s4, 3
    s_lshl_b32 s7, s7, 3
    s_lshr_b32 s8, s5, 2
    s_add_u32 s7, s7, s8
    s_and_b32 s8, s5, 3
    s_lshl_b32 s8, s8, 2
    s_add_u32 s8, s8, s3
    """)
    p(f"""
    v_and_b32 v{V_T0}, 1, v{V_G}
    v_lshlrev_b32 v{V_T0}, 2, v{V_T0}
    v_or_b32 v{V_F}, v{V_RR}, v{V_T0}
    v_lshlrev_b32 v{V_T0}, 1, v{V_G}
    v_xor_b32 v{V_T0}, v{V_T0}, v{V_I16}
    v_lshlrev_b32 v{V_T0}, 4, v{V_T0}
    v_lshl_add_u32 v{V_DA}, v{V_G}, 13, v{V_T0}
    v_xor_b32 v{V_DB}, 0x80, v{V_DA}
    v_lshl_add_u32 v{V_VA}, v{V_G}, 8, v{V_T0}
    v_xor_b32 v{V_VB}, 0x80, v{V_VA}
    v_lshlrev_b32 v{V_T0}, 3, v{V_G}
    v_lshl_add_u32 v{V_K}, v{V_I16}, 8, v{V_T0}
    v_lshlrev_b32 v{V_ST}, 4, v{V_LANE}
    v_mul_u32_u24 v{V_T0}, 1280, v{V_I16}
    v_lshl_add_u32 v{V_X}, v{V_G}, 4, v{V_T0}
    v_add_u32 v{V_X+1}, 20480, v{V_X}
    v_add_u32 v{V_X+2}, 40960, v{V_X}
    """)
    p(f"""
    v_lshl_add_u32 v{V_T0}, v{V_G}, 3, v{V_RR}
    v_lshlrev_b32 v{V_T0}, 8, v{V_T0}
    v_lshl_add_u32 v{V_T0}, v{V_CC}, 3, v{V_T0}
    v_lshl_add_u32 v{V_T1}, v{V_G}, 2, v{V_RR}
    v_lshlrev_b32 v{V_T1}, 8, v{V_T1}
    v_lshl_add_u32 v{V_T1}, v{V_CC}, 3, v{V_T1}
    s_mul_i32 s9, s3, 12288
    v_add_u32 v{V_T1}, s9, v{V_T1}
    """)
    for t in range(8):
        p(f"""
        v_xor_b32 v{TMP}, {t}, v{V_F}
        v_lshl_add_u32 v{V_TR+t}, v{TMP}, 5, v{V_T0}
        v_lshl_add_u32 v{V_TV+t}, v{TMP}, 5, v{V_T1}
        """)
    p("s_waitcnt lgkmcnt(0)")
    p("s_cmp_eq_u32 s6, 0")
    SX, SK, SV, SWQ, SWS = 40, 44, 48, 52, 56
    srd_sel(p, SX, 16, 26, 983040)
    srd_sel(p, SK, 18, 28, 6291456)
    srd_sel(p, SV, 20, 30, 6291456)
    srd_sel(p, SWQ, 22, 32, 5242880)
    srd(p, SWS, 38, 39, 0x10000000)
    p("""
    s_lshl_b32 s60, s7, 8
    s_lshl_b32 s10, s3, 17
    s_add_u32 s60, s60, s10
    s_lshl_b32 s61, s3, 12
    s_mul_i32 s62, s8, 61440
    s_lshl_b32 s10, s8, 5
    s_add_u32 s10, s10, s7
    s_mul_i32 s63, s10, 12288
    s_add_u32 s64, s63, 4096
    s_add_u32 s65, s63, 8192
    s_mul_i32 s10, s6, 48
    s_mul_i32 s11, s8, 3
    s_add_u32 s10, s10, s11
    s_lshl_b32 s10, s10, 7
    s_lshl_b32 s11, s7, 2
    s_add_u32 s10, s10, s11
    s_lshl_b32 s67, s10, 10
    s_add_u32 s68, s67, 131072
    s_add_u32 s69, s67, 262144
    """)
    def wq_dma(c):
        items = []
        for i in range(4):
            def f(c=c, i=i):
                p(f"s_add_u32 m0, s61, {c*16384 + i*1024}")
                p(f"s_add_u32 s70, s60, {(64*c + 4*i) * 8192}")
                p(f"buffer_load_dwordx4 v{V_DA if i < 2 else V_DB}, s[{SWQ}:{SWQ+3}], s70 offen lds", tag=f"wq{c}")
            items.append(f)
        return items
    def x_load(s):
        return [f"buffer_load_dwordx4 {ar((s*3+u)*4)}, v{V_X+u}, s[{SX}:{SX+3}], s62 offen offset:{64*s}" for u in range(3)]
    def k_loads():
        it = []
        for kt in range(3):
            for T in range(4):
                for hf in range(2):
                    it.append(f"buffer_load_dwordx2 {vr(KF + (kt*4+T)*4 + 2*hf, 2)}, v{V_K}, s[{SK}:{SK+3}], s{63+kt} offen offset:{64*T+32*hf}")
        return it
    def v_dma():
        items = []
        for i in range(12):
            def f(i=i):
                p(f"s_add_u32 m0, s9, {i*1024}")
                p(f"s_add_u32 s70, s63, {i*1024}")
                p(f"buffer_load_dwordx4 v{V_VA if i % 2 == 0 else V_VB}, s[{SV}:{SV+3}], s70 offen lds", tag="v")
            items.append(f)
        return items
    def chunk_loads(c):
        return wq_dma(c) + x_load(2*c) + x_load(2*c+1)
    def run(items):
        for x in items:
            if callable(x): x()
            else: p(x)
    for c in range(4): run(chunk_loads(c))
    kl = k_loads()
    run(kl[:22])
    trbase = [0]
    def reads(s):
        c, ks = s // 2, s % 2
        it = []
        off0 = c * 16384 + ks * 8192
        for t in range(8):
            for hf in range(2):
                off = off0 + hf * 1024 - trbase[0]
                assert 0 <= off < 65536
                it.append(f"ds_read_b64_tr_b16 {vr(FR + (s%2)*32 + t*4 + 2*hf, 2)}, v{V_TR+t} offset:{off}")
        return it
    def bump():
        trbase[0] += 65536
        for t in range(8): p(f"v_add_u32 v{V_TR+t}, 0x10000, v{V_TR+t}")
    def mfmas(s):
        it = []
        for t in range(8):
            for u in range(3):
                a = ACC + (t*3+u)*4
                c = "0" if s == 0 else vr(a)
                it.append(f"v_mfma_f32_16x16x32_bf16 {vr(a)}, {vr(FR + (s%2)*32 + t*4)}, {ar((s*3+u)*4)}, {c}")
        return it
    p.wait_tag("wq0"); p("s_barrier")
    run(kl[22:]); run(chunk_loads(4))
    run(reads(0))
    for s in range(20):
        side = []
        if s % 2 == 1 and s < 19:
            c = (s + 1) // 2
            p.wait_tag(f"wq{c}"); p("s_barrier")
            if c in (4, 8): bump()
            if c <= 3: run(chunk_loads(c + 4))
            if c == 4:
                run(chunk_loads(8)); run(chunk_loads(9)); run(v_dma())
        if s < 19: side = reads(s + 1)
        interleave(p, mfmas(s), side, ratio=1)
    QF = FR
    for T in range(4):
        for u in range(3):
            for k in range(4):
                a = ACC + ((2*T + k//2)*3 + u)*4 + 2*(k%2)
                p(f"v_cvt_pk_bf16_f32 v{QF + (T*3+u)*4 + k}, v{a}, v{a+1}")
    ST = ACC
    for u in range(3):
        for kt in range(3):
            for T in range(4):
                d = ST + (kt*3+u)*4
                c = "0" if T == 0 else vr(d)
                p(f"v_mfma_f32_16x16x32_bf16 {vr(d)}, {vr(KF + (kt*4+T)*4)}, {vr(QF + (T*3+u)*4)}, {c}")
    VF = ACC + 40
    p.wait_tag("v")
    for t in range(8):
        for kp in range(3):
            p(f"ds_read_b64_tr_b16 {vr(VF + t*6 + 2*kp, 2)}, v{V_TV+t} offset:{kp*4096}")
    p(f"s_mov_b32 s71, {f32bits(SCALE_LOG2E)}")
    PF = KF
    for u in range(3):
        vals = [ST + (kt*3+u)*4 + r for kt in range(3) for r in range(4)]
        m, t2, sm = TMP, TMP+1, TMP+2
        p(f"v_max3_f32 v{m}, v{vals[0]}, v{vals[1]}, v{vals[2]}")
        for i in range(3, 11, 2):
            p(f"v_max3_f32 v{m}, v{m}, v{vals[i]}, v{vals[i+1]}")
        p(f"v_max_f32 v{m}, v{m}, v{vals[11]}")
        p(f"""
        v_mov_b32 v{t2}, v{m}
        v_permlane16_swap_b32 v{m}, v{t2}
        v_max_f32 v{m}, v{m}, v{t2}
        v_mov_b32 v{t2}, v{m}
        v_permlane32_swap_b32 v{m}, v{t2}
        v_max_f32 v{m}, v{m}, v{t2}
        v_mul_f32 v{m}, s71, v{m}
        """)
        for v in vals:
            p(f"v_fma_f32 v{v}, v{v}, s71, -v{m}")
        for v in vals:
            p(f"v_exp_f32 v{v}, v{v}")
        p(f"v_add_f32 v{sm}, v{vals[0]}, v{vals[1]}")
        for v in vals[2:]:
            p(f"v_add_f32 v{sm}, v{sm}, v{v}")
        p(f"""
        v_mov_b32 v{t2}, v{sm}
        v_permlane16_swap_b32 v{sm}, v{t2}
        v_add_f32 v{sm}, v{sm}, v{t2}
        v_mov_b32 v{t2}, v{sm}
        v_permlane32_swap_b32 v{sm}, v{t2}
        v_add_f32 v{sm}, v{sm}, v{t2}
        v_rcp_f32 v{sm}, v{sm}
        """)
        for v in vals:
            p(f"v_mul_f32 v{v}, v{v}, v{sm}")
        for i in range(6):
            p(f"v_cvt_pk_bf16_f32 v{PF + u*8 + i}, v{vals[2*i]}, v{vals[2*i+1]}")
    for u in range(3):
        for t in range(8):
            d = (t*3+u)*4
            p(f"v_mfma_f32_16x16x32_bf16 {ar(d)}, {vr(VF + t*6)}, {vr(PF + u*8)}, 0")
        for t in range(8):
            d = (t*3+u)*4
            p(f"v_mfma_f32_16x16x16_bf16 {ar(d)}, {vr(VF + t*6 + 4, 2)}, {vr(PF + u*8 + 4, 2)}, {ar(d)}")
    OF = FR
    for u in range(3):
        for T in range(4):
            for k in range(4):
                a = ((2*T + k//2)*3 + u)*4 + 2*(k%2)
                p(f"v_accvgpr_read_b32 v{TMP}, a{a}")
                p(f"v_accvgpr_read_b32 v{TMP+1}, a{a+1}")
                p(f"v_cvt_pk_bf16_f32 v{OF + (u*4+T)*4 + k}, v{TMP}, v{TMP+1}")
            p(f"buffer_store_dwordx4 {vr(OF + (u*4+T)*4)}, v{V_ST}, s[{SWS}:{SWS+3}], s{67+u} offen offset:{T*1024}")
    p("L_k1_end:")
    p("s_endpgm")
    p.finalize()
    return p

def k2():
    p = Prog()
    p("s_cmp_ge_u32 s2, 256")
    p("s_cbranch_scc1 L_k2_end")
    load_ptrs(p)
    V_LANE, V_G, V_RR, V_CC, V_T0, V_T1, V_T2 = 1, 2, 3, 4, 5, 6, 7
    V_L16 = 8
    V_WO = 9
    V_A = 14
    V_B = 29
    FR = 32
    ACC = 96
    p(f"""
    v_and_b32 v{V_LANE}, 63, v0
    v_lshrrev_b32 v{V_T0}, 6, v0
    v_lshrrev_b32 v{V_G}, 4, v{V_LANE}
    v_readfirstlane_b32 s3, v{V_T0}
    v_bfe_u32 v{V_RR}, v0, 2, 2
    v_and_b32 v{V_CC}, 3, v0
    v_lshlrev_b32 v{V_L16}, 4, v{V_LANE}
    s_and_b32 s4, s2, 7
    s_lshr_b32 s5, s2, 3
    s_lshr_b32 s6, s4, 2
    s_and_b32 s7, s4, 3
    s_lshr_b32 s8, s5, 2
    s_and_b32 s9, s5, 3
    s_lshr_b32 s10, s3, 1
    s_and_b32 s11, s3, 1
    s_movk_i32 s12, 3277
    """)
    for j in range(5):
        p(f"""
        v_add_u32 v{V_T0}, {64*j}, v{V_LANE}
        v_mul_u32_u24 v{V_T1}, s12, v{V_T0}
        v_lshrrev_b32 v{V_T1}, 16, v{V_T1}
        v_mul_u32_u24 v{V_T2}, 20, v{V_T1}
        v_sub_u32 v{V_T0}, v{V_T0}, v{V_T2}
        v_bfe_u32 v{V_T2}, v{V_T1}, 2, 1
        v_lshlrev_b32 v{V_T2}, 1, v{V_T2}
        v_xor_b32 v{V_T0}, v{V_T0}, v{V_T2}
        v_lshlrev_b32 v{V_T0}, 4, v{V_T0}
        v_mul_u32_u24 v{V_T1}, 1280, v{V_T1}
        v_add_u32 v{V_WO+j}, v{V_T0}, v{V_T1}
        """)
    p(f"""
    v_lshl_add_u32 v{V_T0}, v{V_G}, 2, v{V_RR}
    v_mul_u32_u24 v{V_T0}, 320, v{V_T0}
    v_lshl_add_u32 v{V_T0}, v{V_CC}, 3, v{V_T0}
    v_and_b32 v{V_T1}, 1, v{V_G}
    s_mul_i32 s13, s11, 5
    """)
    for tt in range(5):
        p(f"""
        s_add_u32 s14, s13, {tt}
        v_xor_b32 v{V_T2}, s14, v{V_T1}
        v_lshl_add_u32 v{V_A+tt}, v{V_T2}, 5, v{V_T0}
        v_add_u32 v{V_A+5+tt}, 0x10000, v{V_A+tt}
        v_add_u32 v{V_A+10+tt}, 0x20000, v{V_A+tt}
        """)
    p(f"""
    s_mul_i32 s13, s10, 6144
    v_add_u32 v{V_B}, s13, v{V_L16}
    v_add_u32 v{V_B+1}, 0x10000, v{V_B}
    v_add_u32 v{V_B+2}, 0x20000, v{V_B}
    """)
    p("s_waitcnt lgkmcnt(0)")
    p("s_cmp_eq_u32 s6, 0")
    SWO, SWS = 40, 44
    srd_sel(p, SWO, 24, 34, 5242880)
    srd(p, SWS, 38, 39, 0x10000000)
    p(f"""
    s_mul_i32 s13, s6, 48
    s_mul_i32 s14, s8, 6
    s_add_u32 s13, s13, s14
    s_mul_i32 s14, s10, 3
    s_add_u32 s13, s13, s14
    s_lshl_b32 s13, s13, 7
    s_lshl_b32 s14, s7, 5
    s_add_u32 s13, s13, s14
    s_add_u32 s13, s13, s11
    s_lshl_b32 s60, s13, 10
    s_mul_i32 s13, s10, 6
    s_add_u32 s13, s13, s11
    s_lshl_b32 s61, s13, 10
    s_lshl_b32 s13, s7, 10
    s_lshl_b32 s14, s3, 4
    s_add_u32 s13, s13, s14
    s_mul_i32 s13, s13, 1280
    s_mul_i32 s14, s9, 320
    s_add_u32 s62, s13, s14
    s_mul_i32 s13, s3, 5120
    s_add_u32 s63, s13, 12288
    s_lshl_b32 s13, s7, 1
    s_add_u32 s13, s13, s6
    s_lshl_b32 s13, s13, 3
    s_add_u32 s13, s13, s8
    s_lshl_b32 s13, s13, 2
    s_add_u32 s13, s13, s9
    s_lshl_b32 s13, s13, 2
    s_add_u32 s13, s13, s3
    s_mul_i32 s64, s13, 15360
    s_add_u32 s64, s64, {WS_P}
    """)
    NS = 5
    def dma(c):
        slot = c % NS
        items = []
        for i in range(3):
            def f(i=i):
                p(f"s_add_u32 m0, s61, {slot*32768 + i*2048}")
                p(f"s_add_u32 s70, s60, {WS_O + i*131072 + c*2048}")
                p(f"buffer_load_dwordx4 v{V_L16}, s[{SWS}:{SWS+3}], s70 offen lds", tag=f"c{c}")
            items.append(f)
        for j in range(5):
            def f(j=j):
                p(f"s_add_u32 m0, s63, {slot*32768 + j*1024}")
                p(f"s_add_u32 s70, s62, {c*64*1280}")
                p(f"buffer_load_dwordx4 v{V_WO+j}, s[{SWO}:{SWO+3}], s70 offen lds", tag=f"c{c}")
            items.append(f)
        return items
    def run(items):
        for x in items:
            if callable(x): x()
            else: p(x)
    def reads(s):
        c, ks = s // 2, s % 2
        slot = c % NS
        it = []
        base = slot * 32768
        fb = FR + (s % 2) * 32
        for u in range(3):
            off = base + (u*2 + ks) * 1024
            it.append(f"ds_read_b128 {vr(fb + 20 + u*4)}, v{V_B + off // 65536} offset:{off % 65536}")
        for tt in range(5):
            for hf in range(2):
                off = base + 12288 + ks*10240 + hf*5120
                it.append(f"ds_read_b64_tr_b16 {vr(fb + tt*4 + 2*hf, 2)}, v{V_A + 5*(off // 65536) + tt} offset:{off % 65536}")
        return it
    def mfmas(s):
        fb = FR + (s % 2) * 32
        it = []
        for tt in range(5):
            for u in range(3):
                a = ACC + (tt*3+u)*4
                c = "0" if s == 0 else vr(a)
                it.append(f"v_mfma_f32_16x16x32_bf16 {vr(a)}, {vr(fb + tt*4)}, {vr(fb + 20 + u*4)}, {c}")
        return it
    for c in range(NS): run(dma(c))
    p.wait_tag("c0"); p("s_barrier")
    run(reads(0))
    for s in range(32):
        side = []
        if s % 2 == 1 and s < 31:
            c = (s + 1) // 2
            p.wait_tag(f"c{c}"); p("s_barrier")
            if c >= 2 and c + 3 < 16: side += dma(c + 3)
        if s < 31: side = reads(s + 1) + side
        interleave(p, mfmas(s), side, ratio=2)
    for tile in range(15):
        if tile % 4 == 0 and tile > 0:
            p(f"s_add_u32 s64, s64, 4096")
        p(f"buffer_store_dwordx4 {vr(ACC + tile*4)}, v{V_L16}, s[{SWS}:{SWS+3}], s64 offen offset:{(tile%4)*1024}")
    p("L_k2_end:")
    p("s_endpgm")
    p.finalize()
    return p

def k3():
    p = Prog()
    p("s_cmp_ge_u32 s2, 256")
    p("s_cbranch_scc1 L_k3_end")
    load_ptrs(p)
    V_LANE, V_G, V_I16, V_T0, V_L16, V_OUT = 1, 2, 3, 4, 5, 6
    D = 8
    p(f"""
    v_and_b32 v{V_LANE}, 63, v0
    v_lshrrev_b32 v{V_T0}, 6, v0
    v_lshrrev_b32 v{V_G}, 4, v{V_LANE}
    v_readfirstlane_b32 s3, v{V_T0}
    v_and_b32 v{V_I16}, 15, v0
    v_lshlrev_b32 v{V_L16}, 4, v{V_LANE}
    v_mul_u32_u24 v{V_OUT}, 2560, v{V_I16}
    v_lshl_add_u32 v{V_OUT}, v{V_G}, 3, v{V_OUT}
    s_and_b32 s4, s2, 7
    s_lshr_b32 s5, s2, 3
    s_lshr_b32 s6, s4, 2
    s_and_b32 s7, s4, 3
    s_lshr_b32 s8, s5, 2
    s_and_b32 s9, s5, 3
    s_lshr_b32 s10, s3, 1
    s_and_b32 s11, s3, 1
    """)
    p("s_waitcnt lgkmcnt(0)")
    SOUT, SWS = 40, 44
    srd(p, SOUT, 36, 37, 16*48*1280*2)
    srd(p, SWS, 38, 39, 0x10000000)
    KSTR = 2*8*4*4*15360
    p(f"""
    s_lshl_b32 s13, s6, 3
    s_add_u32 s13, s13, s8
    s_lshl_b32 s13, s13, 2
    s_add_u32 s13, s13, s9
    s_lshl_b32 s13, s13, 2
    s_add_u32 s13, s13, s3
    s_mul_i32 s60, s13, 15360
    s_lshl_b32 s13, s7, 12
    s_add_u32 s60, s60, s13
    s_add_u32 s60, s60, {WS_P}
    s_add_u32 s61, s60, {KSTR}
    s_add_u32 s62, s60, {2*KSTR}
    s_add_u32 s63, s60, {3*KSTR}
    """)
    p("""
    s_mul_i32 s13, s8, 96
    s_mul_i32 s14, s10, 48
    s_add_u32 s13, s13, s14
    s_mul_i32 s64, s13, 2560
    s_mul_i32 s13, s6, 1280
    s_add_u32 s64, s64, s13
    s_mul_i32 s13, s9, 320
    s_add_u32 s64, s64, s13
    s_mul_i32 s13, s11, 160
    s_add_u32 s64, s64, s13
    """)
    for i in range(4):
        for k in range(4):
            p(f"buffer_load_dwordx4 {vr(D + (i*4+k)*4)}, v{V_L16}, s[{SWS}:{SWS+3}], s{60+k} offen offset:{i*1024}")
    for i in range(4):
        if i == 3:
            p("s_cmp_eq_u32 s7, 3")
            p("s_cbranch_scc1 L_k3_end")
        p(f"""
        s_lshl_b32 s13, s7, 2
        s_add_u32 s13, s13, {i}
        s_mul_i32 s14, s13, 11
        s_lshr_b32 s14, s14, 5
        s_mul_i32 s15, s14, 3
        s_sub_u32 s13, s13, s15
        s_mul_i32 s13, s13, 40960
        s_lshl_b32 s14, s14, 5
        s_add_u32 s13, s13, s14
        s_add_u32 s65, s64, s13
        """)
        b = D + i*16
        for r in range(4):
            p(f"v_add_f32 v{b+r}, v{b+r}, v{b+4+r}")
            p(f"v_add_f32 v{b+8+r}, v{b+8+r}, v{b+12+r}")
            p(f"v_add_f32 v{b+r}, v{b+r}, v{b+8+r}")
        p(f"v_cvt_pk_bf16_f32 v{b+4}, v{b}, v{b+1}")
        p(f"v_cvt_pk_bf16_f32 v{b+5}, v{b+2}, v{b+3}")
        p(f"buffer_store_dwordx2 {vr(b+4, 2)}, v{V_OUT}, s[{SOUT}:{SOUT+3}], s65 offen")
    p("L_k3_end:")
    p("s_endpgm")
    p.finalize()
    return p

def kd(name, vgpr, accum, sgpr=96):
    return f""".amdhsa_kernel {name}
  .amdhsa_next_free_vgpr {vgpr}
  .amdhsa_next_free_sgpr {sgpr}
  .amdhsa_accum_offset {accum}
  .amdhsa_group_segment_fixed_size 0
  .amdhsa_kernarg_size 104
  .amdhsa_user_sgpr_count 2
  .amdhsa_user_sgpr_kernarg_segment_ptr 1
  .amdhsa_system_sgpr_workgroup_id_x 1
.end_amdhsa_kernel
"""

def build(out):
    hdr = open("cdna_kernels/" + NAME + ".s.ref").read().split("; Override launch")[0]
    s = hdr
    s += "; @launch kernel=k1_kernel grid=(256,1,1) block=(256,1,1) lds=163840\n"
    s += "; @launch kernel=k2_kernel grid=(256,1,1) block=(256,1,1) lds=163840\n"
    s += "; @launch kernel=k3_kernel grid=(256,1,1) block=(256,1,1) lds=0\n"
    s += '.amdgcn_target "amdgcn-amd-amdhsa--gfx950"\n.text\n'
    for nm, f in (("k1_kernel", k1), ("k2_kernel", k2), ("k3_kernel", k3)):
        s += f".globl {nm}\n.p2align 8\n.type {nm},@function\n{nm}:\n" + f().text()
    s += '.section .rodata,"a"\n.p2align 6\n'
    s += kd("k1_kernel", 512, 256) + ".p2align 6\n" + kd("k2_kernel", 160, 160) + ".p2align 6\n" + kd("k3_kernel", 72, 72)
    open(out, "w").write(s)

if __name__ == "__main__":
    build(sys.argv[1] if len(sys.argv) > 1 else "cdna_kernels/" + NAME + ".s")
```

```python
import sys, math
from asmlib import *
NAME = "concat_heads__mha_block_cached__gqa_block_cached__near_ridge"
WS_O = 0
WS_P = 16 << 20
SCALE_LOG2E = (128 ** -0.5) * math.log2(math.e)
import struct
def f32bits(x): return struct.unpack('<I', struct.pack('<f', x))[0]

def vr(b, n=4): return f"v[{b}:{b+n-1}]"
def ar(b, n=4): return f"a[{b}:{b+n-1}]"

STAMP = False
WS_STAMP = 64 << 20
def stamp_begin(p):
    if STAMP:
        p("s_memrealtime s[90:91]")
def stamp_mid(p, slot):
    if STAMP:
        p(f"s_memrealtime s[{80+2*slot}:{81+2*slot}]")
def stamp_end(p, kidx, sws, vtmp):
    if STAMP:
        p("s_waitcnt vmcnt(0)")
        p("s_memrealtime s[92:93]")
        p("s_waitcnt lgkmcnt(0)")
        p(f"""
        s_lshl_b32 s94, s2, 2
        s_add_u32 s94, s94, s3
        s_lshl_b32 s94, s94, 5
        s_add_u32 s94, s94, {WS_STAMP + kidx*65536}
        v_mov_b32 v{vtmp}, s90
        v_mov_b32 v{vtmp+1}, s80
        v_mov_b32 v{vtmp+2}, s82
        v_mov_b32 v{vtmp+3}, s84
        v_mov_b32 v{vtmp+4}, s86
        v_mov_b32 v{vtmp+5}, s88
        v_mov_b32 v{vtmp+6}, s92
        v_mov_b32 v{vtmp+7}, 0
        v_mov_b32 v{vtmp+8}, 0
        buffer_store_dwordx4 v[{vtmp}:{vtmp+3}], v{vtmp+8}, s[{sws}:{sws+3}], s94 offen
        buffer_store_dwordx4 v[{vtmp+4}:{vtmp+7}], v{vtmp+8}, s[{sws}:{sws+3}], s94 offen offset:16
        """)

def load_ptrs(p):
    stamp_begin(p)
    if STAMP:
        for i in range(80, 90): p(f"s_mov_b32 s{i}, 0")
    p("""
    s_load_dwordx16 s[16:31], s[0:1], 0
    s_load_dwordx4 s[32:35], s[0:1], 64
    s_load_dwordx2 s[36:37], s[0:1], 80
    s_load_dwordx2 s[38:39], s[0:1], 96
    """)

def srd(p, d, lo, hi, size):
    p(f"""
    s_mov_b32 s{d}, s{lo}
    s_mov_b32 s{d+1}, s{hi}
    s_mov_b32 s{d+2}, {size}
    s_mov_b32 s{d+3}, 0x20000
    """)

def srd_sel(p, d, a, b, size):
    p(f"""
    s_cselect_b32 s{d}, s{a}, s{b}
    s_cselect_b32 s{d+1}, s{a+1}, s{b+1}
    s_mov_b32 s{d+2}, {size}
    s_mov_b32 s{d+3}, 0x20000
    """)

def k1():
    p = Prog()
    p("s_cmp_ge_u32 s2, 256")
    p("s_cbranch_scc1 L_k1_end")
    load_ptrs(p)
    V_LANE, V_G, V_I16, V_RR, V_CC, V_F, V_T0, V_T1 = 1, 2, 3, 4, 5, 6, 7, 8
    V_DA, V_DB, V_VA, V_VB, V_K, V_ST = 9, 10, 11, 12, 13, 14
    V_X = 15
    V_TR = 18
    V_TV = 26
    FR = 36
    ACC = 100
    KF = 196
    TMP = 244
    p(f"""
    v_and_b32 v{V_LANE}, 63, v0
    v_lshrrev_b32 v{V_T0}, 6, v0
    v_lshrrev_b32 v{V_G}, 4, v{V_LANE}
    v_readfirstlane_b32 s3, v{V_T0}
    v_and_b32 v{V_I16}, 15, v0
    v_bfe_u32 v{V_RR}, v0, 2, 2
    v_and_b32 v{V_CC}, 3, v0
    s_and_b32 s4, s2, 7
    s_lshr_b32 s5, s2, 3
    s_lshr_b32 s6, s4, 2
    s_and_b32 s7, s4, 3
    s_lshl_b32 s7, s7, 3
    s_lshr_b32 s8, s5, 2
    s_add_u32 s7, s7, s8
    s_and_b32 s8, s5, 3
    s_lshl_b32 s8, s8, 2
    s_add_u32 s8, s8, s3
    """)
    p(f"""
    v_and_b32 v{V_T0}, 1, v{V_G}
    v_lshlrev_b32 v{V_T0}, 2, v{V_T0}
    v_or_b32 v{V_F}, v{V_RR}, v{V_T0}
    v_lshlrev_b32 v{V_T0}, 1, v{V_G}
    v_xor_b32 v{V_T0}, v{V_T0}, v{V_I16}
    v_lshlrev_b32 v{V_T0}, 4, v{V_T0}
    v_lshl_add_u32 v{V_DA}, v{V_G}, 13, v{V_T0}
    v_xor_b32 v{V_DB}, 0x80, v{V_DA}
    v_lshl_add_u32 v{V_VA}, v{V_G}, 8, v{V_T0}
    v_xor_b32 v{V_VB}, 0x80, v{V_VA}
    v_lshlrev_b32 v{V_T0}, 3, v{V_G}
    v_lshl_add_u32 v{V_K}, v{V_I16}, 8, v{V_T0}
    v_lshlrev_b32 v{V_ST}, 4, v{V_LANE}
    v_mul_u32_u24 v{V_T0}, 1280, v{V_I16}
    v_lshl_add_u32 v{V_X}, v{V_G}, 4, v{V_T0}
    v_add_u32 v{V_X+1}, 20480, v{V_X}
    v_add_u32 v{V_X+2}, 40960, v{V_X}
    """)
    p(f"""
    v_lshl_add_u32 v{V_T0}, v{V_G}, 3, v{V_RR}
    v_lshlrev_b32 v{V_T0}, 8, v{V_T0}
    v_lshl_add_u32 v{V_T0}, v{V_CC}, 3, v{V_T0}
    v_lshl_add_u32 v{V_T1}, v{V_G}, 2, v{V_RR}
    v_lshlrev_b32 v{V_T1}, 8, v{V_T1}
    v_lshl_add_u32 v{V_T1}, v{V_CC}, 3, v{V_T1}
    s_mul_i32 s9, s3, 12288
    v_add_u32 v{V_T1}, s9, v{V_T1}
    """)
    for t in range(8):
        p(f"""
        v_xor_b32 v{TMP}, {t}, v{V_F}
        v_lshl_add_u32 v{V_TR+t}, v{TMP}, 5, v{V_T0}
        v_lshl_add_u32 v{V_TV+t}, v{TMP}, 5, v{V_T1}
        """)
    p("s_waitcnt lgkmcnt(0)")
    stamp_mid(p, 0)
    p("s_cmp_eq_u32 s6, 0")
    SX, SK, SV, SWQ, SWS = 40, 44, 48, 52, 56
    srd_sel(p, SX, 16, 26, 983040)
    srd_sel(p, SK, 18, 28, 6291456)
    srd_sel(p, SV, 20, 30, 6291456)
    srd_sel(p, SWQ, 22, 32, 5242880)
    srd(p, SWS, 38, 39, 0x10000000)
    p("""
    s_lshl_b32 s60, s7, 8
    s_lshl_b32 s10, s3, 17
    s_add_u32 s60, s60, s10
    s_lshl_b32 s61, s3, 12
    s_mul_i32 s62, s8, 61440
    s_lshl_b32 s10, s8, 5
    s_add_u32 s10, s10, s7
    s_mul_i32 s63, s10, 12288
    s_add_u32 s64, s63, 4096
    s_add_u32 s65, s63, 8192
    s_mul_i32 s10, s6, 48
    s_mul_i32 s11, s8, 3
    s_add_u32 s10, s10, s11
    s_lshl_b32 s10, s10, 7
    s_lshl_b32 s11, s7, 2
    s_add_u32 s10, s10, s11
    s_lshl_b32 s67, s10, 10
    s_add_u32 s68, s67, 131072
    s_add_u32 s69, s67, 262144
    """)
    def wq_dma(c):
        items = []
        for i in range(4):
            def f(c=c, i=i):
                p(f"s_add_u32 m0, s61, {c*16384 + i*1024}")
                p(f"s_add_u32 s70, s60, {(64*c + 4*i) * 8192}")
                p(f"buffer_load_dwordx4 v{V_DA if i < 2 else V_DB}, s[{SWQ}:{SWQ+3}], s70 offen lds", tag=f"wq{c}")
            items.append(f)
        return items
    def x_load(s):
        return [f"buffer_load_dwordx4 {ar((s*3+u)*4)}, v{V_X+u}, s[{SX}:{SX+3}], s62 offen offset:{64*s}" for u in range(3)]
    def k_loads():
        it = []
        for kt in range(3):
            for T in range(4):
                for hf in range(2):
                    it.append(f"buffer_load_dwordx2 {vr(KF + (kt*4+T)*4 + 2*hf, 2)}, v{V_K}, s[{SK}:{SK+3}], s{63+kt} offen offset:{64*T+32*hf}")
        return it
    def v_dma():
        items = []
        for i in range(12):
            def f(i=i):
                p(f"s_add_u32 m0, s9, {i*1024}")
                p(f"s_add_u32 s70, s63, {i*1024}")
                p(f"buffer_load_dwordx4 v{V_VA if i % 2 == 0 else V_VB}, s[{SV}:{SV+3}], s70 offen lds", tag="v")
            items.append(f)
        return items
    def chunk_loads(c):
        return wq_dma(c) + x_load(2*c) + x_load(2*c+1)
    def run(items):
        for x in items:
            if callable(x): x()
            else: p(x)
    for c in range(4): run(chunk_loads(c))
    kl = k_loads()
    run(kl[:22])
    trbase = [0]
    def reads(s):
        c, ks = s // 2, s % 2
        it = []
        off0 = c * 16384 + ks * 8192
        for t in range(8):
            for hf in range(2):
                off = off0 + hf * 1024 - trbase[0]
                assert 0 <= off < 65536
                it.append(f"ds_read_b64_tr_b16 {vr(FR + (s%2)*32 + t*4 + 2*hf, 2)}, v{V_TR+t} offset:{off}")
        return it
    def bump():
        trbase[0] += 65536
        for t in range(8): p(f"v_add_u32 v{V_TR+t}, 0x10000, v{V_TR+t}")
    def mfmas(s):
        it = []
        for t in range(8):
            for u in range(3):
                a = ACC + (t*3+u)*4
                c = "0" if s == 0 else vr(a)
                it.append(f"v_mfma_f32_16x16x32_bf16 {vr(a)}, {vr(FR + (s%2)*32 + t*4)}, {ar((s*3+u)*4)}, {c}")
        return it
    stamp_mid(p, 1)
    p.wait_tag("wq0"); p("s_barrier")
    stamp_mid(p, 2)
    run(kl[22:]); run(chunk_loads(4))
    run(reads(0))
    for s in range(20):
        side = []
        if s % 2 == 1 and s < 19:
            c = (s + 1) // 2
            p.wait_tag(f"wq{c}"); p("s_barrier")
            if c == 4: stamp_mid(p, 3)
            if c in (4, 8): bump()
            if c <= 3: run(chunk_loads(c + 4))
            if c == 4:
                run(chunk_loads(8)); run(chunk_loads(9)); run(v_dma())
        if s < 19: side = reads(s + 1)
        interleave(p, mfmas(s), side, ratio=1)
    stamp_mid(p, 4)
    QF = FR
    for T in range(4):
        for u in range(3):
            for k in range(4):
                a = ACC + ((2*T + k//2)*3 + u)*4 + 2*(k%2)
                p(f"v_cvt_pk_bf16_f32 v{QF + (T*3+u)*4 + k}, v{a}, v{a+1}")
    ST = ACC
    for u in range(3):
        for kt in range(3):
            for T in range(4):
                d = ST + (kt*3+u)*4
                c = "0" if T == 0 else vr(d)
                p(f"v_mfma_f32_16x16x32_bf16 {vr(d)}, {vr(KF + (kt*4+T)*4)}, {vr(QF + (T*3+u)*4)}, {c}")
    VF = ACC + 40
    p.wait_tag("v")
    for t in range(8):
        for kp in range(3):
            p(f"ds_read_b64_tr_b16 {vr(VF + t*6 + 2*kp, 2)}, v{V_TV+t} offset:{kp*4096}")
    p(f"s_mov_b32 s71, {f32bits(SCALE_LOG2E)}")
    PF = KF
    for u in range(3):
        vals = [ST + (kt*3+u)*4 + r for kt in range(3) for r in range(4)]
        m, t2, sm = TMP, TMP+1, TMP+2
        p(f"v_max3_f32 v{m}, v{vals[0]}, v{vals[1]}, v{vals[2]}")
        for i in range(3, 11, 2):
            p(f"v_max3_f32 v{m}, v{m}, v{vals[i]}, v{vals[i+1]}")
        p(f"v_max_f32 v{m}, v{m}, v{vals[11]}")
        p(f"""
        v_mov_b32 v{t2}, v{m}
        v_permlane16_swap_b32 v{m}, v{t2}
        v_max_f32 v{m}, v{m}, v{t2}
        v_mov_b32 v{t2}, v{m}
        v_permlane32_swap_b32 v{m}, v{t2}
        v_max_f32 v{m}, v{m}, v{t2}
        v_mul_f32 v{m}, s71, v{m}
        """)
        for v in vals:
            p(f"v_fma_f32 v{v}, v{v}, s71, -v{m}")
        for v in vals:
            p(f"v_exp_f32 v{v}, v{v}")
        p(f"v_add_f32 v{sm}, v{vals[0]}, v{vals[1]}")
        for v in vals[2:]:
            p(f"v_add_f32 v{sm}, v{sm}, v{v}")
        p(f"""
        v_mov_b32 v{t2}, v{sm}
        v_permlane16_swap_b32 v{sm}, v{t2}
        v_add_f32 v{sm}, v{sm}, v{t2}
        v_mov_b32 v{t2}, v{sm}
        v_permlane32_swap_b32 v{sm}, v{t2}
        v_add_f32 v{sm}, v{sm}, v{t2}
        v_rcp_f32 v{sm}, v{sm}
        """)
        for v in vals:
            p(f"v_mul_f32 v{v}, v{v}, v{sm}")
        for i in range(6):
            p(f"v_cvt_pk_bf16_f32 v{PF + u*8 + i}, v{vals[2*i]}, v{vals[2*i+1]}")
    for u in range(3):
        for t in range(8):
            d = (t*3+u)*4
            p(f"v_mfma_f32_16x16x32_bf16 {ar(d)}, {vr(VF + t*6)}, {vr(PF + u*8)}, 0")
        for t in range(8):
            d = (t*3+u)*4
            p(f"v_mfma_f32_16x16x16_bf16 {ar(d)}, {vr(VF + t*6 + 4, 2)}, {vr(PF + u*8 + 4, 2)}, {ar(d)}")
    OF = FR
    for u in range(3):
        for T in range(4):
            for k in range(4):
                a = ((2*T + k//2)*3 + u)*4 + 2*(k%2)
                p(f"v_accvgpr_read_b32 v{TMP}, a{a}")
                p(f"v_accvgpr_read_b32 v{TMP+1}, a{a+1}")
                p(f"v_cvt_pk_bf16_f32 v{OF + (u*4+T)*4 + k}, v{TMP}, v{TMP+1}")
            p(f"buffer_store_dwordx4 {vr(OF + (u*4+T)*4)}, v{V_ST}, s[{SWS}:{SWS+3}], s{67+u} offen offset:{T*1024}")
    stamp_end(p, 0, SWS, 100)
    p("L_k1_end:")
    p("s_endpgm")
    p.finalize()
    return p

def k2():
    p = Prog()
    p("s_cmp_ge_u32 s2, 256")
    p("s_cbranch_scc1 L_k2_end")
    load_ptrs(p)
    V_LANE, V_G, V_RR, V_CC, V_T0, V_T1, V_T2 = 1, 2, 3, 4, 5, 6, 7
    V_L16 = 8
    V_WO = 9
    V_A = 14
    V_B = 29
    FR = 32
    ACC = 96
    p(f"""
    v_and_b32 v{V_LANE}, 63, v0
    v_lshrrev_b32 v{V_T0}, 6, v0
    v_lshrrev_b32 v{V_G}, 4, v{V_LANE}
    v_readfirstlane_b32 s3, v{V_T0}
    v_bfe_u32 v{V_RR}, v0, 2, 2
    v_and_b32 v{V_CC}, 3, v0
    v_lshlrev_b32 v{V_L16}, 4, v{V_LANE}
    s_and_b32 s4, s2, 7
    s_lshr_b32 s5, s2, 3
    s_lshr_b32 s6, s4, 2
    s_and_b32 s7, s4, 3
    s_lshr_b32 s8, s5, 2
    s_and_b32 s9, s5, 3
    s_lshr_b32 s10, s3, 1
    s_and_b32 s11, s3, 1
    s_movk_i32 s12, 3277
    """)
    for j in range(5):
        p(f"""
        v_add_u32 v{V_T0}, {64*j}, v{V_LANE}
        v_mul_u32_u24 v{V_T1}, s12, v{V_T0}
        v_lshrrev_b32 v{V_T1}, 16, v{V_T1}
        v_mul_u32_u24 v{V_T2}, 20, v{V_T1}
        v_sub_u32 v{V_T0}, v{V_T0}, v{V_T2}
        v_bfe_u32 v{V_T2}, v{V_T1}, 2, 1
        v_lshlrev_b32 v{V_T2}, 1, v{V_T2}
        v_xor_b32 v{V_T0}, v{V_T0}, v{V_T2}
        v_lshlrev_b32 v{V_T0}, 4, v{V_T0}
        v_mul_u32_u24 v{V_T1}, 1280, v{V_T1}
        v_add_u32 v{V_WO+j}, v{V_T0}, v{V_T1}
        """)
    p(f"""
    v_lshl_add_u32 v{V_T0}, v{V_G}, 2, v{V_RR}
    v_mul_u32_u24 v{V_T0}, 320, v{V_T0}
    v_lshl_add_u32 v{V_T0}, v{V_CC}, 3, v{V_T0}
    v_and_b32 v{V_T1}, 1, v{V_G}
    s_mul_i32 s13, s11, 5
    """)
    for tt in range(5):
        p(f"""
        s_add_u32 s14, s13, {tt}
        v_xor_b32 v{V_T2}, s14, v{V_T1}
        v_lshl_add_u32 v{V_A+tt}, v{V_T2}, 5, v{V_T0}
        v_add_u32 v{V_A+5+tt}, 0x10000, v{V_A+tt}
        v_add_u32 v{V_A+10+tt}, 0x20000, v{V_A+tt}
        """)
    p(f"""
    s_mul_i32 s13, s10, 6144
    v_add_u32 v{V_B}, s13, v{V_L16}
    v_add_u32 v{V_B+1}, 0x10000, v{V_B}
    v_add_u32 v{V_B+2}, 0x20000, v{V_B}
    """)
    p("s_waitcnt lgkmcnt(0)")
    p("s_cmp_eq_u32 s6, 0")
    SWO, SWS = 40, 44
    srd_sel(p, SWO, 24, 34, 5242880)
    srd(p, SWS, 38, 39, 0x10000000)
    p(f"""
    s_mul_i32 s13, s6, 48
    s_mul_i32 s14, s8, 6
    s_add_u32 s13, s13, s14
    s_mul_i32 s14, s10, 3
    s_add_u32 s13, s13, s14
    s_lshl_b32 s13, s13, 7
    s_lshl_b32 s14, s7, 5
    s_add_u32 s13, s13, s14
    s_add_u32 s13, s13, s11
    s_lshl_b32 s60, s13, 10
    s_mul_i32 s13, s10, 6
    s_add_u32 s13, s13, s11
    s_lshl_b32 s61, s13, 10
    s_lshl_b32 s13, s7, 10
    s_lshl_b32 s14, s3, 4
    s_add_u32 s13, s13, s14
    s_mul_i32 s13, s13, 1280
    s_mul_i32 s14, s9, 320
    s_add_u32 s62, s13, s14
    s_mul_i32 s13, s3, 5120
    s_add_u32 s63, s13, 12288
    s_lshl_b32 s13, s7, 1
    s_add_u32 s13, s13, s6
    s_lshl_b32 s13, s13, 3
    s_add_u32 s13, s13, s8
    s_lshl_b32 s13, s13, 2
    s_add_u32 s13, s13, s9
    s_lshl_b32 s13, s13, 2
    s_add_u32 s13, s13, s3
    s_mul_i32 s64, s13, 15360
    s_add_u32 s64, s64, {WS_P}
    """)
    NS = 5
    def dma(c):
        slot = c % NS
        items = []
        for i in range(3):
            def f(i=i):
                p(f"s_add_u32 m0, s61, {slot*32768 + i*2048}")
                p(f"s_add_u32 s70, s60, {WS_O + i*131072 + c*2048}")
                p(f"buffer_load_dwordx4 v{V_L16}, s[{SWS}:{SWS+3}], s70 offen lds", tag=f"c{c}")
            items.append(f)
        for j in range(5):
            def f(j=j):
                p(f"s_add_u32 m0, s63, {slot*32768 + j*1024}")
                p(f"s_add_u32 s70, s62, {c*64*1280}")
                p(f"buffer_load_dwordx4 v{V_WO+j}, s[{SWO}:{SWO+3}], s70 offen lds", tag=f"c{c}")
            items.append(f)
        return items
    def run(items):
        for x in items:
            if callable(x): x()
            else: p(x)
    def reads(s):
        c, ks = s // 2, s % 2
        slot = c % NS
        it = []
        base = slot * 32768
        fb = FR + (s % 2) * 32
        for u in range(3):
            off = base + (u*2 + ks) * 1024
            it.append(f"ds_read_b128 {vr(fb + 20 + u*4)}, v{V_B + off // 65536} offset:{off % 65536}")
        for tt in range(5):
            for hf in range(2):
                off = base + 12288 + ks*10240 + hf*5120
                it.append(f"ds_read_b64_tr_b16 {vr(fb + tt*4 + 2*hf, 2)}, v{V_A + 5*(off // 65536) + tt} offset:{off % 65536}")
        return it
    def mfmas(s):
        fb = FR + (s % 2) * 32
        it = []
        for tt in range(5):
            for u in range(3):
                a = ACC + (tt*3+u)*4
                c = "0" if s == 0 else vr(a)
                it.append(f"v_mfma_f32_16x16x32_bf16 {vr(a)}, {vr(fb + tt*4)}, {vr(fb + 20 + u*4)}, {c}")
        return it
    for c in range(NS): run(dma(c))
    p.wait_tag("c0"); p("s_barrier")
    stamp_mid(p, 0)
    run(reads(0))
    for s in range(32):
        side = []
        if s % 2 == 1 and s < 31:
            c = (s + 1) // 2
            p.wait_tag(f"c{c}"); p("s_barrier")
            if c >= 2 and c + 3 < 16: side += dma(c + 3)
        if s < 31: side = reads(s + 1) + side
        interleave(p, mfmas(s), side, ratio=2)
    stamp_mid(p, 1)
    for tile in range(15):
        if tile % 4 == 0 and tile > 0:
            p(f"s_add_u32 s64, s64, 4096")
        p(f"buffer_store_dwordx4 {vr(ACC + tile*4)}, v{V_L16}, s[{SWS}:{SWS+3}], s64 offen offset:{(tile%4)*1024}")
    stamp_end(p, 1, SWS, 32)
    p("L_k2_end:")
    p("s_endpgm")
    p.finalize()
    return p

def k3():
    p = Prog()
    p("s_cmp_ge_u32 s2, 256")
    p("s_cbranch_scc1 L_k3_end")
    load_ptrs(p)
    V_LANE, V_G, V_I16, V_T0, V_L16, V_OUT = 1, 2, 3, 4, 5, 6
    D = 8
    p(f"""
    v_and_b32 v{V_LANE}, 63, v0
    v_lshrrev_b32 v{V_T0}, 6, v0
    v_lshrrev_b32 v{V_G}, 4, v{V_LANE}
    v_readfirstlane_b32 s3, v{V_T0}
    v_and_b32 v{V_I16}, 15, v0
    v_lshlrev_b32 v{V_L16}, 4, v{V_LANE}
    v_mul_u32_u24 v{V_OUT}, 2560, v{V_I16}
    v_lshl_add_u32 v{V_OUT}, v{V_G}, 3, v{V_OUT}
    s_and_b32 s4, s2, 7
    s_lshr_b32 s5, s2, 3
    s_lshr_b32 s6, s4, 2
    s_and_b32 s7, s4, 3
    s_lshr_b32 s8, s5, 2
    s_and_b32 s9, s5, 3
    s_lshr_b32 s10, s3, 1
    s_and_b32 s11, s3, 1
    """)
    p("s_waitcnt lgkmcnt(0)")
    SOUT, SWS = 40, 44
    srd(p, SOUT, 36, 37, 16*48*1280*2)
    srd(p, SWS, 38, 39, 0x10000000)
    KSTR = 2*8*4*4*15360
    p(f"""
    s_lshl_b32 s13, s6, 3
    s_add_u32 s13, s13, s8
    s_lshl_b32 s13, s13, 2
    s_add_u32 s13, s13, s9
    s_lshl_b32 s13, s13, 2
    s_add_u32 s13, s13, s3
    s_mul_i32 s60, s13, 15360
    s_lshl_b32 s13, s7, 12
    s_add_u32 s60, s60, s13
    s_add_u32 s60, s60, {WS_P}
    s_add_u32 s61, s60, {KSTR}
    s_add_u32 s62, s60, {2*KSTR}
    s_add_u32 s63, s60, {3*KSTR}
    """)
    p("""
    s_mul_i32 s13, s8, 96
    s_mul_i32 s14, s10, 48
    s_add_u32 s13, s13, s14
    s_mul_i32 s64, s13, 2560
    s_mul_i32 s13, s6, 1280
    s_add_u32 s64, s64, s13
    s_mul_i32 s13, s9, 320
    s_add_u32 s64, s64, s13
    s_mul_i32 s13, s11, 160
    s_add_u32 s64, s64, s13
    """)
    for i in range(4):
        for k in range(4):
            p(f"buffer_load_dwordx4 {vr(D + (i*4+k)*4)}, v{V_L16}, s[{SWS}:{SWS+3}], s{60+k} offen offset:{i*1024}")
    for i in range(4):
        if i == 3:
            p("s_cmp_eq_u32 s7, 3")
            p("s_cbranch_scc1 L_k3_fin")
        p(f"""
        s_lshl_b32 s13, s7, 2
        s_add_u32 s13, s13, {i}
        s_mul_i32 s14, s13, 11
        s_lshr_b32 s14, s14, 5
        s_mul_i32 s15, s14, 3
        s_sub_u32 s13, s13, s15
        s_mul_i32 s13, s13, 40960
        s_lshl_b32 s14, s14, 5
        s_add_u32 s13, s13, s14
        s_add_u32 s65, s64, s13
        """)
        b = D + i*16
        for r in range(4):
            p(f"v_add_f32 v{b+r}, v{b+r}, v{b+4+r}")
            p(f"v_add_f32 v{b+8+r}, v{b+8+r}, v{b+12+r}")
            p(f"v_add_f32 v{b+r}, v{b+r}, v{b+8+r}")
        p(f"v_cvt_pk_bf16_f32 v{b+4}, v{b}, v{b+1}")
        p(f"v_cvt_pk_bf16_f32 v{b+5}, v{b+2}, v{b+3}")
        p(f"buffer_store_dwordx2 {vr(b+4, 2)}, v{V_OUT}, s[{SOUT}:{SOUT+3}], s65 offen")
    p("L_k3_fin:")
    stamp_end(p, 2, SWS, 8)
    p("L_k3_end:")
    p("s_endpgm")
    p.finalize()
    return p

def kd(name, vgpr, accum, sgpr=96):
    return f""".amdhsa_kernel {name}
  .amdhsa_next_free_vgpr {vgpr}
  .amdhsa_next_free_sgpr {sgpr}
  .amdhsa_accum_offset {accum}
  .amdhsa_group_segment_fixed_size 0
  .amdhsa_kernarg_size 104
  .amdhsa_user_sgpr_count 2
  .amdhsa_user_sgpr_kernarg_segment_ptr 1
  .amdhsa_system_sgpr_workgroup_id_x 1
.end_amdhsa_kernel
"""

def build(out):
    hdr = open("cdna_kernels/" + NAME + ".s.ref").read().split("; Override launch")[0]
    s = hdr
    s += "; @launch kernel=k1_kernel grid=(256,1,1) block=(256,1,1) lds=163840\n"
    s += "; @launch kernel=k2_kernel grid=(256,1,1) block=(256,1,1) lds=163840\n"
    s += "; @launch kernel=k3_kernel grid=(256,1,1) block=(256,1,1) lds=0\n"
    s += '.amdgcn_target "amdgcn-amd-amdhsa--gfx950"\n.text\n'
    for nm, f in (("k1_kernel", k1), ("k2_kernel", k2), ("k3_kernel", k3)):
        s += f".globl {nm}\n.p2align 8\n.type {nm},@function\n{nm}:\n" + f().text()
    s += '.section .rodata,"a"\n.p2align 6\n'
    s += kd("k1_kernel", 512, 256) + ".p2align 6\n" + kd("k2_kernel", 160, 160) + ".p2align 6\n" + kd("k3_kernel", 72, 72)
    open(out, "w").write(s)

if __name__ == "__main__":
    if len(sys.argv) > 2 and sys.argv[2] == "stamp": STAMP = True
    build(sys.argv[1] if len(sys.argv) > 1 else "cdna_kernels/" + NAME + ".s")
```

```python
import sys, math, os, struct
from asmlib import *
NAME = "concat_heads__mha_block_cached__gqa_block_cached__near_ridge"
WS_O = 0
WS_P = 16 << 20
WS_F = 48 << 20
WS_STAMP = 64 << 20
SCALE_LOG2E = (128 ** -0.5) * math.log2(math.e)
def f32bits(x): return struct.unpack('<I', struct.pack('<f', x))[0]
def vr(b, n=4): return f"v[{b}:{b+n-1}]"
def env(k, d): return os.environ.get(k, d)
STAMP = False
ROT = env("ROT", "1") == "1"
ROT2 = env("ROT2", "1") == "1"
NT_W = " nt" if env("NT_W", "1") == "1" else ""
NT_X = " nt" if env("NT_X", "1") == "1" else ""
NT_KV = " nt" if env("NT_KV", "1") == "1" else ""
NT_WO = " nt" if env("NT_WO", "0") == "1" else ""
NT_PF = " nt" if env("NT_PF", "0") == "1" else ""
O_ST = env("O_ST", "")
DIST = int(env("DIST", "2"))
DIST2 = int(env("DIST2", "2"))
KV_START = int(env("KV_START", "2"))
KV_END = int(env("KV_END", "9"))
PFWO = int(env("PFWO", "9"))
SLEEP = int(env("SLEEP", "4"))
SPIN_MAX = 200000
SX, SK, SV, SWQ, SWS, SWO, SOUT = 40, 44, 48, 52, 56, 60, 64
V_LANE, V_G, V_I16, V_RR, V_CC, V_F, V_T0, V_T1, V_T2, V_L16 = 1, 2, 3, 4, 5, 6, 7, 8, 9, 10

def srd(p, d, lo, hi, size):
    p(f"s_mov_b32 s{d}, s{lo}\ns_mov_b32 s{d+1}, s{hi}\ns_mov_b32 s{d+2}, {size}\ns_mov_b32 s{d+3}, 0x20000")
def srd_sel(p, d, a, b, size):
    p(f"s_cselect_b32 s{d}, s{a}, s{b}\ns_cselect_b32 s{d+1}, s{a+1}, s{b+1}\ns_mov_b32 s{d+2}, {size}\ns_mov_b32 s{d+3}, 0x20000")
def stamp(p, slot):
    if STAMP: p(f"s_memrealtime s[{80+2*slot}:{81+2*slot}]")
def stamp_end(p, kidx, vt):
    if STAMP:
        p("s_waitcnt vmcnt(0)")
        stamp(p, 6)
        p("s_waitcnt lgkmcnt(0)")
        p(f"s_lshl_b32 s96, s2, 2\ns_add_u32 s96, s96, s3\ns_lshl_b32 s96, s96, 5\ns_add_u32 s96, s96, {WS_STAMP + kidx*65536}")
        for i in range(8): p(f"v_mov_b32 v{vt+i}, s{80+2*i}")
        p(f"""
        v_mov_b32 v{vt+8}, 0
        buffer_store_dwordx4 v[{vt}:{vt+3}], v{vt+8}, s[{SWS}:{SWS+3}], s96 offen
        buffer_store_dwordx4 v[{vt+4}:{vt+7}], v{vt+8}, s[{SWS}:{SWS+3}], s96 offen offset:16
        """)

def head(tag):
    p = Prog()
    p("s_cmp_ge_u32 s2, 256")
    p(f"s_cbranch_scc1 L_end_{tag}")
    if STAMP:
        for i in range(80, 96): p(f"s_mov_b32 s{i}, 0")
    stamp(p, 0)
    p("""
    s_load_dwordx16 s[16:31], s[0:1], 0
    s_load_dwordx8 s[32:39], s[0:1], 64
    s_load_dwordx2 s[14:15], s[0:1], 96
    """)
    p(f"""
    v_and_b32 v{V_LANE}, 63, v0
    v_lshrrev_b32 v{V_T0}, 6, v0
    v_lshrrev_b32 v{V_G}, 4, v{V_LANE}
    v_readfirstlane_b32 s79, v{V_T0}
    v_and_b32 v{V_I16}, 15, v0
    v_bfe_u32 v{V_RR}, v0, 2, 2
    v_and_b32 v{V_CC}, 3, v0
    v_lshlrev_b32 v{V_L16}, 4, v{V_LANE}
    s_and_b32 s3, s79, 3
    s_and_b32 s4, s2, 7
    s_lshr_b32 s5, s2, 3
    s_lshr_b32 s6, s4, 2
    s_and_b32 s7, s4, 3
    s_lshr_b32 s8, s5, 2
    s_and_b32 s9, s5, 3
    """)
    p("s_waitcnt lgkmcnt(0)")
    p("s_cmp_eq_u32 s6, 0")
    if tag == "k1":
        srd_sel(p, SX, 16, 26, 983040)
        srd_sel(p, SK, 18, 28, 6291456)
        srd_sel(p, SV, 20, 30, 6291456)
        srd_sel(p, SWQ, 22, 32, 5242880)
    srd_sel(p, SWO, 24, 34, 5242880)
    srd(p, SWS, 14, 15, 0x10000000)
    if tag == "k2": srd(p, SOUT, 36, 37, 16*48*1280*2)
    p("""
    s_lshl_b32 s16, s7, 3
    s_add_u32 s16, s16, s8
    s_lshl_b32 s17, s9, 1
    s_lshr_b32 s10, s8, 2
    s_add_u32 s17, s17, s10
    s_and_b32 s18, s8, 3
    """)
    p("s_cmp_ge_u32 s79, 4")
    p(f"s_cbranch_scc1 L_loader_{tag}")
    return p

def k1():
    NSL = 4
    LX = 65536
    hd = head("k1")
    p = Prog()
    V_XR = 11; V_TR = 13; V_TV = 21; V_KR = 29
    T3 = 37
    FR = 40; ACC = 136; TMP = 232
    p(f"""
    s_mul_i32 s10, s3, 24576
    s_add_u32 s77, s10, {LX}
    s_lshl_b32 s22, s9, 2
    s_add_u32 s22, s22, s3
    v_and_b32 v{V_T0}, 1, v{V_G}
    v_lshlrev_b32 v{V_T0}, 2, v{V_T0}
    v_or_b32 v{V_F}, v{V_RR}, v{V_T0}
    v_lshrrev_b32 v{V_T0}, 1, v{V_I16}
    v_xor_b32 v{V_T0}, v{V_T0}, v{V_G}
    v_lshlrev_b32 v{V_T1}, 7, v{V_I16}
    v_add_u32 v{V_T1}, s77, v{V_T1}
    v_lshl_add_u32 v{V_XR}, v{V_T0}, 4, v{V_T1}
    v_xor_b32 v{V_T0}, 4, v{V_T0}
    v_lshl_add_u32 v{V_XR+1}, v{V_T0}, 4, v{V_T1}
    v_lshl_add_u32 v{V_T0}, v{V_G}, 3, v{V_RR}
    v_lshlrev_b32 v{V_T0}, 8, v{V_T0}
    v_lshl_add_u32 v{V_T0}, v{V_CC}, 3, v{V_T0}
    v_lshl_add_u32 v{V_T1}, v{V_G}, 2, v{V_RR}
    v_lshlrev_b32 v{V_T1}, 8, v{V_T1}
    v_lshl_add_u32 v{V_T1}, v{V_CC}, 3, v{V_T1}
    v_add_u32 v{V_T1}, s77, v{V_T1}
    """)
    for t in range(8):
        p(f"""
        v_xor_b32 v{TMP}, {t}, v{V_F}
        v_lshl_add_u32 v{V_TR+t}, v{TMP}, 5, v{V_T0}
        v_lshl_add_u32 v{V_TV+t}, v{TMP}, 5, v{V_T1}
        """)
    p(f"""
    v_lshrrev_b32 v{V_T0}, 1, v{V_G}
    v_xor_b32 v{V_T0}, v{V_T0}, v{V_I16}
    v_and_b32 v{V_T1}, 1, v{V_G}
    v_lshlrev_b32 v{V_T1}, 3, v{V_T1}
    v_lshl_add_u32 v{V_T1}, v{V_I16}, 8, v{V_T1}
    v_add_u32 v{V_T1}, s77, v{V_T1}
    """)
    for j in range(8):
        p(f"""
        v_xor_b32 v{TMP}, {2*j}, v{V_T0}
        v_lshl_add_u32 v{V_KR+j}, v{TMP}, 4, v{V_T1}
        """)
    p(f"""
    s_mul_i32 s10, s6, 48
    s_mul_i32 s11, s22, 3
    s_add_u32 s10, s10, s11
    s_lshl_b32 s10, s10, 7
    s_lshl_b32 s11, s16, 2
    s_add_u32 s10, s10, s11
    s_lshl_b32 s24, s10, 10
    s_add_u32 s25, s24, 131072
    s_add_u32 s26, s24, 262144
    s_mov_b32 s98, {f32bits(SCALE_LOG2E)}
    """)
    def run(items):
        for x in items:
            if callable(x): x()
            else: p(x)
    def reads(s):
        c, ks = s // 2, s % 2
        it = []
        fb = FR + (s % 2) * 44
        for u in range(3):
            it.append(f"ds_read_b128 {vr(fb + 32 + u*4)}, v{V_XR + ks} offset:{(c % NSL)*6144 + u*2048}")
        off0 = (c % NSL) * 16384 + ks * 8192
        for t in range(8):
            for hf in range(2):
                it.append(f"ds_read_b64_tr_b16 {vr(fb + t*4 + 2*hf, 2)}, v{V_TR+t} offset:{off0 + hf*1024}")
        return it
    def mfmas(s, order_u=False):
        it = []
        fb = FR + (s % 2) * 44
        idx = [(t, u) for u in range(3) for t in range(8)] if order_u else [(t, u) for t in range(8) for u in range(3)]
        for t, u in idx:
            a = ACC + (t*3+u)*4
            c = "0" if s == 0 else vr(a)
            it.append(f"v_mfma_f32_16x16x32_bf16 {vr(a)}, {vr(fb + t*4)}, {vr(fb + 32 + u*4)}, {c}")
        return it
    def KF(i): return 40 + 4*i if i < 11 else 128
    def QF(i): return 84 + 4*i if i < 11 else 132
    kreads = [f"ds_read_b64 {vr(KF(kt*4+T) + 2*hf, 2)}, v{V_KR + 2*T + hf} offset:{12288 + kt*4096}" for kt in range(3) for T in range(4) for hf in range(2)]
    p("s_barrier")
    stamp(p, 1)
    run(reads(0))
    for s in range(20):
        if s % 2 == 1:
            p.wait_lg(0)
            p("s_barrier")
        side = reads(s + 1) if s < 19 else kreads
        interleave(p, mfmas(s, order_u=(s == 19)), side, ratio=1)
    stamp(p, 2)
    ST = ACC
    VF = ACC + 40
    PFR = TMP
    AO = 40
    def cvtq(u):
        it = []
        for T in range(4):
            for k in range(4):
                a = ACC + ((2*T + k//2)*3 + u)*4 + 2*(k%2)
                it.append(f"v_cvt_pk_bf16_f32 v{QF(T*3+u) + k}, v{a}, v{a+1}")
        return it
    def st(u):
        it = []
        for T in range(4):
            for kt in range(3):
                d = ST + (kt*3+u)*4
                c = "0" if T == 0 else vr(d)
                it.append(f"v_mfma_f32_16x16x32_bf16 {vr(d)}, {vr(KF(kt*4+T))}, {vr(QF(T*3+u))}, {c}")
        return it
    def sm(u):
        it = []
        vals = [ST + (kt*3+u)*4 + r for kt in range(3) for r in range(4)]
        m, t2, sm_ = T3, T3+1, T3+2
        it.append(f"v_max3_f32 v{m}, v{vals[0]}, v{vals[1]}, v{vals[2]}")
        it.append(f"v_max3_f32 v{t2}, v{vals[3]}, v{vals[4]}, v{vals[5]}")
        it.append(f"v_max3_f32 v{m}, v{m}, v{vals[6]}, v{vals[7]}")
        it.append(f"v_max3_f32 v{t2}, v{t2}, v{vals[8]}, v{vals[9]}")
        it.append(f"v_max3_f32 v{m}, v{m}, v{vals[10]}, v{vals[11]}")
        it.append(f"v_max_f32 v{m}, v{m}, v{t2}")
        it += [f"v_mov_b32 v{t2}, v{m}", f"v_permlane16_swap_b32 v{m}, v{t2}", f"v_max_f32 v{m}, v{m}, v{t2}",
               f"v_mov_b32 v{t2}, v{m}", f"v_permlane32_swap_b32 v{m}, v{t2}", f"v_max_f32 v{m}, v{m}, v{t2}",
               f"v_mul_f32 v{m}, s98, v{m}"]
        for v in vals: it.append(f"v_fma_f32 v{v}, v{v}, s98, -v{m}")
        for v in vals: it.append(f"v_exp_f32 v{v}, v{v}")
        it.append(f"v_add_f32 v{sm_}, v{vals[0]}, v{vals[1]}")
        it.append(f"v_add_f32 v{t2}, v{vals[2]}, v{vals[3]}")
        for i in range(4, 12, 2):
            it.append(f"v_add_f32 v{sm_}, v{sm_}, v{vals[i]}")
            it.append(f"v_add_f32 v{t2}, v{t2}, v{vals[i+1]}")
        it.append(f"v_add_f32 v{sm_}, v{sm_}, v{t2}")
        it += [f"v_mov_b32 v{t2}, v{sm_}", f"v_permlane16_swap_b32 v{sm_}, v{t2}", f"v_add_f32 v{sm_}, v{sm_}, v{t2}",
               f"v_mov_b32 v{t2}, v{sm_}", f"v_permlane32_swap_b32 v{sm_}, v{t2}", f"v_add_f32 v{sm_}, v{sm_}, v{t2}",
               f"v_rcp_f32 v{sm_}, v{sm_}"]
        for v in vals: it.append(f"v_mul_f32 v{v}, v{v}, v{sm_}")
        for i in range(6): it.append(f"v_cvt_pk_bf16_f32 v{PFR + u*8 + i}, v{vals[2*i]}, v{vals[2*i+1]}")
        return it
    def pv(u):
        it = []
        for t in range(8):
            d = AO + (t*3+u)*4
            it.append(f"v_mfma_f32_16x16x32_bf16 {vr(d)}, {vr(VF + t*6)}, {vr(PFR + u*8)}, 0")
        for t in range(8):
            d = AO + (t*3+u)*4
            it.append(f"v_mfma_f32_16x16x16_bf16 {vr(d)}, {vr(VF + t*6 + 4, 2)}, {vr(PFR + u*8 + 4, 2)}, {vr(d)}")
        return it
    def cvto(u):
        it = []
        for T in range(4):
            r0 = AO + ((2*T)*3 + u)*4
            r1 = AO + ((2*T+1)*3 + u)*4
            it += [f"v_cvt_pk_bf16_f32 v{r0}, v{r0}, v{r0+1}", f"v_cvt_pk_bf16_f32 v{r0+1}, v{r0+2}, v{r0+3}",
                   f"v_cvt_pk_bf16_f32 v{r0+2}, v{r1}, v{r1+1}", f"v_cvt_pk_bf16_f32 v{r0+3}, v{r1+2}, v{r1+3}",
                   f"buffer_store_dwordx4 {vr(r0)}, v{V_L16}, s[{SWS}:{SWS+3}], s{24+u} offen offset:{T*1024}{O_ST}"]
        return it
    vreads = [f"ds_read_b64_tr_b16 {vr(VF + t*6 + 2*kp, 2)}, v{V_TV+t} offset:{kp*4096}" for t in range(8) for kp in range(3)]
    run(cvtq(0))
    interleave(p, st(0), cvtq(1), ratio=2)
    interleave(p, st(1), cvtq(2), ratio=2)
    p("s_barrier")
    s0 = sm(0)
    interleave(p, st(2), vreads + s0[:12], ratio=3)
    run(s0[12:])
    interleave(p, pv(0), sm(1), ratio=5)
    interleave(p, pv(1), sm(2) , ratio=5)
    run(cvto(0))
    interleave(p, pv(2), cvto(1), ratio=2)
    run(cvto(2))
    stamp_end(p, 0, 136)
    p("s_endpgm")
    comp = p

    p = Prog()
    p("L_loader_k1:")
    p("s_cmp_ge_u32 s79, 6")
    p("s_cbranch_scc1 L_kv")
    V_DA, V_DB, V_XD, V_PF = 11, 12, 13, 16
    p(f"""
    s_and_b32 s23, s79, 1
    v_lshlrev_b32 v{V_T0}, 1, v{V_G}
    v_xor_b32 v{V_T0}, v{V_T0}, v{V_I16}
    v_lshlrev_b32 v{V_T0}, 4, v{V_T0}
    v_lshl_add_u32 v{V_DA}, v{V_G}, 13, v{V_T0}
    v_xor_b32 v{V_DB}, 0x80, v{V_DA}
    v_lshrrev_b32 v{V_T0}, 3, v{V_LANE}
    v_mul_u32_u24 v{V_T0}, 1280, v{V_T0}
    v_and_b32 v{V_T1}, 7, v{V_LANE}
    v_xor_b32 v{V_T1}, v{V_T1}, v{V_G}
    v_lshl_add_u32 v{V_XD}, v{V_T1}, 4, v{V_T0}
    v_xor_b32 v{V_T1}, 4, v{V_T1}
    v_lshl_add_u32 v{V_XD+1}, v{V_T1}, 4, v{V_T0}
    s_lshl_b32 s24, s16, 8
    s_lshl_b32 s10, s23, 18
    s_add_u32 s24, s24, s10
    s_lshl_b32 s25, s23, 13
    s_lshl_b32 s22, s9, 2
    s_lshl_b32 s10, s23, 1
    s_add_u32 s22, s22, s10
    s_mul_i32 s26, s22, 61440
    s_mul_i32 s77, s23, 49152
    s_add_u32 s77, s77, {LX}
    s_mul_i32 s10, s9, 5
    s_lshr_b32 s10, s10, 1
    s_mul_i32 s11, s8, 5
    s_lshr_b32 s11, s11, 2
    s_add_u32 s72, s10, s11
    s_cmp_ge_u32 s72, 10
    s_cselect_b32 s10, 10, 0
    s_sub_u32 s72, s72, s10
    """)
    if not ROT: p("s_mov_b32 s72, 0")
    def chunk_loads(c):
        if c > 0:
            p("s_add_u32 s72, s72, 1\ns_cmp_ge_u32 s72, 10\ns_cselect_b32 s10, 10, 0\ns_sub_u32 s72, s72, s10")
        p("s_lshl_b32 s73, s72, 19\ns_add_u32 s73, s73, s24\ns_lshl_b32 s74, s72, 7\ns_add_u32 s74, s74, s26")
        for i in range(8):
            p(f"s_add_u32 m0, s25, {(c % NSL)*16384 + i*1024}")
            p(f"s_add_u32 s97, s73, {(4*i) * 8192}")
            p(f"buffer_load_dwordx4 v{V_DA if (i % 4) < 2 else V_DB}, s[{SWQ}:{SWQ+3}], s97 offen{NT_W} lds", tag=f"c{c}")
        for ww in range(2):
            for j in range(6):
                p(f"s_add_u32 m0, s77, {ww*24576 + (c % NSL)*6144 + j*1024}")
                p(f"s_add_u32 s97, s74, {ww*61440 + j * 10240}")
                p(f"buffer_load_dwordx4 v{V_XD + j % 2}, s[{SX}:{SX+3}], s97 offen{NT_X} lds", tag=f"c{c}")
    def pf_wo():
        p(f"""
        s_lshl_b32 s10, s5, 1
        s_add_u32 s10, s10, s23
        s_lshl_b32 s11, s7, 6
        s_add_u32 s10, s10, s11
        s_mul_i32 s75, s10, 20480
        v_lshlrev_b32 v{V_PF}, 7, v{V_LANE}
        v_add_u32 v{V_PF+1}, 8192, v{V_PF}
        v_add_u32 v{V_PF+2}, 16384, v{V_PF}
        v_cmp_lt_u32 vcc, 31, v{V_LANE}
        v_cndmask_b32 v{V_PF+2}, v{V_PF+2}, -1, vcc
        buffer_load_dword v{V_PF+4}, v{V_PF}, s[{SWO}:{SWO+3}], s75 offen{NT_PF}
        buffer_load_dword v{V_PF+5}, v{V_PF+1}, s[{SWO}:{SWO+3}], s75 offen{NT_PF}
        buffer_load_dword v{V_PF+6}, v{V_PF+2}, s[{SWO}:{SWO+3}], s75 offen{NT_PF}
        """)
    p(f"""
    s_lshl_b32 s10, s2, 7
    s_add_u32 s10, s10, {WS_F}
    v_mov_b32 v{V_PF}, 0
    buffer_store_dword v{V_PF}, v{V_PF}, s[{SWS}:{SWS+3}], s10 offen
    """)
    for c in range(DIST): chunk_loads(c)
    for c in range(10):
        p.wait_tag(f"c{c}"); p("s_barrier")
        if c + DIST < 10: chunk_loads(c + DIST)
        if c == PFWO: pf_wo()
    p("s_barrier")
    if PFWO == 10: pf_wo()
    p("s_barrier")
    if PFWO == 11: pf_wo()
    p("s_endpgm")
    load1 = p
    p = Prog()
    p("L_kv:")
    V_VA, V_VB, V_WR, V_KD = 11, 12, 13, 14
    RS = 32
    p(f"""
    s_and_b32 s23, s79, 1
    v_lshlrev_b32 v{V_T0}, 1, v{V_G}
    v_xor_b32 v{V_T0}, v{V_T0}, v{V_I16}
    v_lshlrev_b32 v{V_T0}, 4, v{V_T0}
    v_lshl_add_u32 v{V_VA}, v{V_G}, 8, v{V_T0}
    v_xor_b32 v{V_VB}, 0x80, v{V_VA}
    s_mul_i32 s77, s23, 49152
    s_add_u32 s77, s77, {LX}
    v_add_u32 v{V_WR}, s77, v{V_L16}
    v_xor_b32 v{V_T0}, v{V_G}, v{V_I16}
    v_lshlrev_b32 v{V_T0}, 4, v{V_T0}
    v_lshl_add_u32 v{V_KD}, v{V_G}, 8, v{V_T0}
    v_xor_b32 v{V_KD+1}, 0x40, v{V_KD}
    v_xor_b32 v{V_KD+2}, 0x80, v{V_KD}
    v_xor_b32 v{V_KD+3}, 0xc0, v{V_KD}
    s_lshl_b32 s22, s9, 2
    s_lshl_b32 s10, s23, 1
    s_add_u32 s22, s22, s10
    s_lshl_b32 s10, s22, 5
    s_add_u32 s10, s10, s16
    s_mul_i32 s24, s10, 12288
    s_add_u32 s25, s24, 4096
    s_add_u32 s26, s24, 8192
    s_add_u32 s27, s24, 393216
    s_add_u32 s28, s27, 4096
    s_add_u32 s29, s27, 8192
    """)
    kv = []
    for ww in range(2):
        kv += [f"buffer_load_dwordx4 {vr(RS + ww*96 + i*4)}, v{V_KD + i % 4}, s[{SK}:{SK+3}], s{24 + 3*ww + i//4} offen offset:{(i%4)*1024}{NT_KV}" for i in range(12)]
    for ww in range(2):
        kv += [f"buffer_load_dwordx4 {vr(RS + ww*96 + 48 + i*4)}, v{V_VA if i % 2 == 0 else V_VB}, s[{SV}:{SV+3}], s{24 + 3*ww + i//4} offen offset:{(i%4)*1024}{NT_KV}" for i in range(12)]
    nb = KV_END - KV_START
    per = (len(kv) + nb - 1) // nb
    for c in range(-1, 10):
        if c >= 0: p("s_barrier")
        if c >= KV_START:
            for x in kv[:per]: p(x)
            kv = kv[per:]
    for x in kv: p(x)
    for ww in range(2):
        for i in range(12):
            p(f"ds_write_b128 v{V_WR}, {vr(RS + ww*96 + i*4)} offset:{ww*24576 + 12288 + i*1024}")
    p.wait_lg(0)
    p("s_barrier")
    for ww in range(2):
        for i in range(12):
            p(f"ds_write_b128 v{V_WR}, {vr(RS + ww*96 + 48 + i*4)} offset:{ww*24576 + i*1024}")
    p.wait_lg(0)
    p("s_barrier")
    p("L_end_k1:")
    p("s_endpgm")
    load2 = p
    for q in (hd, comp, load1, load2): q.finalize()
    hd.ins = hd.ins + comp.ins + load1.ins + load2.ins
    return hd

def k2():
    NS = 5
    hd = head("k2")
    p = Prog()
    V_A = 11; V_B = 26; V_OUT = 29
    FR2 = 32; ACC2 = 96; D = 156
    p("""
    s_lshr_b32 s10, s3, 1
    s_and_b32 s11, s3, 1
    """)
    p(f"""
    v_lshl_add_u32 v{V_T0}, v{V_G}, 2, v{V_RR}
    v_mul_u32_u24 v{V_T0}, 320, v{V_T0}
    v_lshl_add_u32 v{V_T0}, v{V_CC}, 3, v{V_T0}
    v_and_b32 v{V_T1}, 1, v{V_G}
    s_mul_i32 s13, s11, 5
    """)
    for tt in range(5):
        p(f"""
        s_add_u32 s12, s13, {tt}
        v_xor_b32 v{V_T2}, s12, v{V_T1}
        v_lshl_add_u32 v{V_A+tt}, v{V_T2}, 5, v{V_T0}
        v_add_u32 v{V_A+5+tt}, 0x10000, v{V_A+tt}
        v_add_u32 v{V_A+10+tt}, 0x20000, v{V_A+tt}
        """)
    p(f"""
    s_mul_i32 s13, s10, 6144
    v_add_u32 v{V_B}, s13, v{V_L16}
    v_add_u32 v{V_B+1}, 0x10000, v{V_B}
    v_add_u32 v{V_B+2}, 0x20000, v{V_B}
    v_mul_u32_u24 v{V_OUT}, 2560, v{V_I16}
    v_lshl_add_u32 v{V_OUT}, v{V_G}, 3, v{V_OUT}
    s_lshl_b32 s13, s6, 3
    s_add_u32 s13, s13, s17
    s_lshl_b32 s13, s13, 2
    s_add_u32 s13, s13, s18
    s_lshl_b32 s13, s13, 4
    s_add_u32 s13, s13, s3
    s_mul_i32 s27, s13, 15360
    s_add_u32 s27, s27, {WS_P}
    s_mul_i32 s12, s7, 61440
    s_add_u32 s28, s27, s12
    s_mul_i32 s13, s17, 96
    s_mul_i32 s12, s10, 48
    s_add_u32 s13, s13, s12
    s_mul_i32 s29, s13, 2560
    s_mul_i32 s13, s6, 1280
    s_add_u32 s29, s29, s13
    s_mul_i32 s13, s18, 320
    s_add_u32 s29, s29, s13
    s_mul_i32 s13, s11, 160
    s_add_u32 s29, s29, s13
    """)
    def run(items):
        for x in items:
            if callable(x): x()
            else: p(x)
    def reads2(s):
        c, ks = s // 2, s % 2
        base = (c % NS) * 32768
        fb = FR2 + (s % 2) * 32
        it = []
        for u in range(3):
            off = base + (u*2 + ks) * 1024
            it.append(f"ds_read_b128 {vr(fb + 20 + u*4)}, v{V_B + off // 65536} offset:{off % 65536}")
        for tt in range(5):
            for hf in range(2):
                off = base + 12288 + ks*10240 + hf*5120
                it.append(f"ds_read_b64_tr_b16 {vr(fb + tt*4 + 2*hf, 2)}, v{V_A + 5*(off // 65536) + tt} offset:{off % 65536}")
        return it
    def mfmas2(s):
        fb = FR2 + (s % 2) * 32
        it = []
        for tt in range(5):
            for u in range(3):
                a = ACC2 + (tt*3+u)*4
                c = "0" if s == 0 else vr(a)
                it.append(f"v_mfma_f32_16x16x32_bf16 {vr(a)}, {vr(fb + tt*4)}, {vr(fb + 20 + u*4)}, {c}")
        return it
    p("s_barrier")
    stamp(p, 1)
    run(reads2(0))
    for s in range(32):
        if s % 2 == 1 and s < 31: p("s_barrier")
        side = reads2(s + 1) if s < 31 else []
        interleave(p, mfmas2(s), side, ratio=1)
    stamp(p, 2)
    p("s_nop 15")
    for q in range(4):
        p(f"s_cmp_eq_u32 s7, {q}")
        p(f"s_cbranch_scc1 L_skipq{q}")
        p(f"s_add_u32 s30, s28, {q*4096}")
        for i in range(4):
            tile = 4*q + i
            if tile < 15:
                p.raw(f"buffer_store_dwordx4 {vr(ACC2 + tile*4)}, v{V_L16}, s[{SWS}:{SWS+3}], s30 offen offset:{i*1024} sc1")
        p(f"L_skipq{q}:")
    for q in range(4):
        p(f"s_cmp_lg_u32 s7, {q}")
        p(f"s_cbranch_scc1 L_nown{q}")
        for i in range(4):
            tile = min(4*q + i, 14)
            for r in range(4):
                p.raw(f"v_mov_b32 v{FR2 + i*4 + r}, v{ACC2 + tile*4 + r}")
        p(f"L_nown{q}:")
    p("s_waitcnt vmcnt(0)")
    stamp(p, 3)
    p("s_barrier")
    p("s_barrier")
    stamp(p, 4)
    p("s_lshl_b32 s31, s7, 12")
    p("s_add_u32 s31, s31, s27")
    for jj in range(3):
        p(f"s_add_u32 s30, s7, {jj+1}\ns_and_b32 s30, s30, 3\ns_mul_i32 s30, s30, 61440\ns_add_u32 s30, s30, s31")
        for i in range(4):
            p(f"buffer_load_dwordx4 {vr(D + (jj*4+i)*4)}, v{V_L16}, s[{SWS}:{SWS+3}], s30 offen offset:{i*1024} sc1")
    for i in range(4):
        if i == 3:
            p("s_cmp_eq_u32 s7, 3")
            p("s_cbranch_scc1 L_fin")
        p(f"""
        s_lshl_b32 s13, s7, 2
        s_add_u32 s13, s13, {i}
        s_mul_i32 s12, s13, 11
        s_lshr_b32 s12, s12, 5
        s_mul_i32 s11, s12, 3
        s_sub_u32 s13, s13, s11
        s_mul_i32 s13, s13, 40960
        s_lshl_b32 s12, s12, 5
        s_add_u32 s13, s13, s12
        s_add_u32 s30, s29, s13
        """)
        b0 = FR2 + i*4
        b1, b2, b3 = [D + (j*4+i)*4 for j in range(3)]
        for r in range(4):
            p(f"v_add_f32 v{b0+r}, v{b0+r}, v{b1+r}")
            p(f"v_add_f32 v{b2+r}, v{b2+r}, v{b3+r}")
            p(f"v_add_f32 v{b0+r}, v{b0+r}, v{b2+r}")
        p(f"v_cvt_pk_bf16_f32 v{b1}, v{b0}, v{b0+1}")
        p(f"v_cvt_pk_bf16_f32 v{b1+1}, v{b0+2}, v{b0+3}")
        p(f"buffer_store_dwordx2 {vr(b1, 2)}, v{V_OUT}, s[{SOUT}:{SOUT+3}], s30 offen")
    p("L_fin:")
    stamp_end(p, 1, 60)
    p("s_endpgm")
    comp = p
    p = Prog()
    p("L_loader_k2:")
    V_WO = 11; V_FL = 16; V_FD = 18
    p("s_movk_i32 s12, 3277")
    for j in range(5):
        p(f"""
        v_add_u32 v{V_T0}, {64*j}, v{V_LANE}
        v_mul_u32_u24 v{V_T1}, s12, v{V_T0}
        v_lshrrev_b32 v{V_T1}, 16, v{V_T1}
        v_mul_u32_u24 v{V_T2}, 20, v{V_T1}
        v_sub_u32 v{V_T0}, v{V_T0}, v{V_T2}
        v_bfe_u32 v{V_T2}, v{V_T1}, 2, 1
        v_lshlrev_b32 v{V_T2}, 1, v{V_T2}
        v_xor_b32 v{V_T0}, v{V_T0}, v{V_T2}
        v_lshlrev_b32 v{V_T0}, 4, v{V_T0}
        v_mul_u32_u24 v{V_T1}, 1280, v{V_T1}
        v_add_u32 v{V_WO+j}, v{V_T0}, v{V_T1}
        """)
    p(f"""
    s_lshr_b32 s10, s3, 1
    s_and_b32 s11, s3, 1
    s_mul_i32 s13, s6, 48
    s_mul_i32 s12, s17, 6
    s_add_u32 s13, s13, s12
    s_mul_i32 s12, s10, 3
    s_add_u32 s13, s13, s12
    s_lshl_b32 s13, s13, 7
    s_lshl_b32 s12, s7, 5
    s_add_u32 s13, s13, s12
    s_add_u32 s13, s13, s11
    s_lshl_b32 s24, s13, 10
    s_mul_i32 s13, s10, 6
    s_add_u32 s13, s13, s11
    s_lshl_b32 s25, s13, 10
    s_lshl_b32 s13, s7, 10
    s_lshl_b32 s12, s3, 4
    s_add_u32 s13, s13, s12
    s_mul_i32 s13, s13, 1280
    s_mul_i32 s12, s18, 320
    s_add_u32 s26, s13, s12
    s_mul_i32 s13, s3, 5120
    s_add_u32 s27, s13, 12288
    s_lshl_b32 s72, s18, 2
    s_lshl_b32 s13, s17, 1
    s_add_u32 s72, s72, s13
    s_and_b32 s72, s72, 15
    """)
    if not ROT2: p("s_mov_b32 s72, 0")
    p(f"""
    s_lshl_b32 s10, s2, 7
    s_add_u32 s10, s10, {WS_F}
    v_mov_b32 v{V_FL}, s10
    s_and_b32 s10, s2, 0xfc
    s_lshl_b32 s10, s10, 7
    s_add_u32 s10, s10, {WS_F}
    v_and_b32 v{V_T0}, 3, v{V_LANE}
    v_lshlrev_b32 v{V_T0}, 7, v{V_T0}
    v_add_u32 v{V_FL+1}, s10, v{V_T0}
    """)
    def dma(c):
        slot = c % NS
        p(f"s_add_u32 s73, s72, {c}\ns_and_b32 s73, s73, 15")
        p("s_mul_i32 s74, s73, 81920\ns_add_u32 s74, s74, s26")
        p("s_lshl_b32 s73, s73, 11\ns_add_u32 s73, s73, s24")
        for i in range(3):
            p(f"s_add_u32 m0, s25, {slot*32768 + i*2048}")
            p(f"s_add_u32 s97, s73, {WS_O + i*131072}")
            p(f"buffer_load_dwordx4 v{V_L16}, s[{SWS}:{SWS+3}], s97 offen lds", tag=f"c{c}")
        for j in range(5):
            p(f"s_add_u32 m0, s27, {slot*32768 + j*1024}")
            p("s_nop 0")
            p(f"buffer_load_dwordx4 v{V_WO+j}, s[{SWO}:{SWO+3}], s74 offen{NT_WO} lds", tag=f"c{c}")
    nxt = 0
    for c in range(DIST2): dma(c); nxt += 1
    for c in range(16):
        p.wait_tag(f"c{c}"); p("s_barrier")
        if nxt <= min(15, c + DIST2): dma(nxt); nxt += 1
    p("s_cmp_lg_u32 s79, 4")
    p("s_cbranch_scc1 L_end_k2")
    p.raw("s_barrier")
    p.raw(f"v_mov_b32 v{V_FD}, 1")
    p.raw(f"buffer_store_dword v{V_FD}, v{V_FL}, s[{SWS}:{SWS+3}], 0 offen sc1")
    p.raw(f"s_mov_b32 s76, {SPIN_MAX}")
    p.raw("L_poll2:")
    p.raw(f"buffer_load_dword v{V_FD}, v{V_FL+1}, s[{SWS}:{SWS+3}], 0 offen sc1")
    p.raw("s_waitcnt vmcnt(0)")
    p.raw(f"v_cmp_ne_u32 vcc, 1, v{V_FD}")
    p.raw("s_nop 4")
    p.raw("s_cmp_eq_u64 vcc, 0")
    p.raw("s_cbranch_scc1 L_done2")
    p.raw(f"s_sleep {SLEEP}")
    p.raw("s_sub_u32 s76, s76, 1")
    p.raw("s_cmp_lg_u32 s76, 0")
    p.raw("s_cbranch_scc1 L_poll2")
    p.raw("L_done2:")
    p.raw("s_barrier")
    p("L_end_k2:")
    p("s_endpgm")
    load = p
    for q in (hd, comp, load): q.finalize()
    hd.ins = hd.ins + comp.ins + load.ins
    return hd

def kd(name, vgpr, sgpr=100):
    return f""".amdhsa_kernel {name}
  .amdhsa_next_free_vgpr {vgpr}
  .amdhsa_next_free_sgpr {sgpr}
  .amdhsa_accum_offset {vgpr}
  .amdhsa_group_segment_fixed_size 0
  .amdhsa_kernarg_size 104
  .amdhsa_user_sgpr_count 2
  .amdhsa_user_sgpr_kernarg_segment_ptr 1
  .amdhsa_system_sgpr_workgroup_id_x 1
.end_amdhsa_kernel
"""
def build(out):
    hdr = open("cdna_kernels/" + NAME + ".s.ref").read().split("; Override launch")[0]
    s = hdr
    s += "; @launch kernel=k1_kernel grid=(256,1,1) block=(512,1,1) lds=163840\n"
    s += "; @launch kernel=k2_kernel grid=(256,1,1) block=(512,1,1) lds=163840\n"
    s += '.amdgcn_target "amdgcn-amd-amdhsa--gfx950"\n.text\n'
    for nm, f in (("k1_kernel", k1), ("k2_kernel", k2)):
        s += f".globl {nm}\n.p2align 8\n.type {nm},@function\n{nm}:\n" + f().text()
    s += '.section .rodata,"a"\n.p2align 6\n'
    s += kd("k1_kernel", 256) + ".p2align 6\n" + kd("k2_kernel", 256)
    open(out, "w").write(s)
if __name__ == "__main__":
    if len(sys.argv) > 2 and sys.argv[2] == "stamp": STAMP = True
    build(sys.argv[1])
```

```python
import sys, math, os, struct
from asmlib import *
NAME = "concat_heads__mha_block_cached__gqa_block_cached__near_ridge"
WS_O = 0
WS_P = 16 << 20
WS_F = 48 << 20
WS_STAMP = 64 << 20
SCALE_LOG2E = (128 ** -0.5) * math.log2(math.e)
def f32bits(x): return struct.unpack('<I', struct.pack('<f', x))[0]
def vr(b, n=4): return f"v[{b}:{b+n-1}]"
def env(k, d): return os.environ.get(k, d)
STAMP = False
ROT = env("ROT", "0") == "1"
ROT2 = env("ROT2", "1") == "1"
NT_W = " nt" if env("NT_W", "0") == "1" else ""
NT_X = " nt" if env("NT_X", "0") == "1" else ""
NT_KV = " nt" if env("NT_KV", "0") == "1" else ""
NT_WO = " nt" if env("NT_WO", "0") == "1" else ""
NT_PF = " nt" if env("NT_PF", "0") == "1" else ""
O_ST = env("O_ST", " sc0 sc1")
DIST = int(env("DIST", "2"))
DIST2 = int(env("DIST2", "2"))
KV_START = int(env("KV_START", "0"))
KV_END = int(env("KV_END", "8"))
PFWO = int(env("PFWO", "10"))
SLEEP = int(env("SLEEP", "4"))
SPIN_MAX = 200000
SX, SK, SV, SWQ, SWS, SWO, SOUT = 40, 44, 48, 52, 56, 60, 64
V_LANE, V_G, V_I16, V_RR, V_CC, V_F, V_T0, V_T1, V_T2, V_L16 = 1, 2, 3, 4, 5, 6, 7, 8, 9, 10

def srd(p, d, lo, hi, size):
    p(f"s_mov_b32 s{d}, s{lo}\ns_mov_b32 s{d+1}, s{hi}\ns_mov_b32 s{d+2}, {size}\ns_mov_b32 s{d+3}, 0x20000")
def srd_sel(p, d, a, b, size):
    p(f"s_cselect_b32 s{d}, s{a}, s{b}\ns_cselect_b32 s{d+1}, s{a+1}, s{b+1}\ns_mov_b32 s{d+2}, {size}\ns_mov_b32 s{d+3}, 0x20000")
def stamp(p, slot):
    if STAMP: p(f"s_memrealtime s[{80+2*slot}:{81+2*slot}]")
def stamp_end(p, kidx, vt):
    if STAMP:
        p("s_waitcnt vmcnt(0)")
        stamp(p, 6)
        p("s_waitcnt lgkmcnt(0)")
        p(f"s_lshl_b32 s96, s2, 2\ns_add_u32 s96, s96, s3\ns_lshl_b32 s96, s96, 5\ns_add_u32 s96, s96, {WS_STAMP + kidx*65536}")
        for i in range(8): p(f"v_mov_b32 v{vt+i}, s{80+2*i}")
        p(f"""
        v_mov_b32 v{vt+8}, 0
        buffer_store_dwordx4 v[{vt}:{vt+3}], v{vt+8}, s[{SWS}:{SWS+3}], s96 offen
        buffer_store_dwordx4 v[{vt+4}:{vt+7}], v{vt+8}, s[{SWS}:{SWS+3}], s96 offen offset:16
        """)

def head(tag):
    p = Prog()
    p("s_cmp_ge_u32 s2, 256")
    p(f"s_cbranch_scc1 L_end_{tag}")
    if STAMP:
        for i in range(80, 96): p(f"s_mov_b32 s{i}, 0")
    stamp(p, 0)
    p("""
    s_load_dwordx16 s[16:31], s[0:1], 0
    s_load_dwordx8 s[32:39], s[0:1], 64
    s_load_dwordx2 s[14:15], s[0:1], 96
    """)
    p(f"""
    v_and_b32 v{V_LANE}, 63, v0
    v_lshrrev_b32 v{V_T0}, 6, v0
    v_lshrrev_b32 v{V_G}, 4, v{V_LANE}
    v_readfirstlane_b32 s79, v{V_T0}
    v_and_b32 v{V_I16}, 15, v0
    v_bfe_u32 v{V_RR}, v0, 2, 2
    v_and_b32 v{V_CC}, 3, v0
    v_lshlrev_b32 v{V_L16}, 4, v{V_LANE}
    s_and_b32 s3, s79, 3
    s_and_b32 s4, s2, 7
    s_lshr_b32 s5, s2, 3
    s_lshr_b32 s6, s4, 2
    s_and_b32 s7, s4, 3
    s_lshr_b32 s8, s5, 2
    s_and_b32 s9, s5, 3
    """)
    p("s_waitcnt lgkmcnt(0)")
    p("s_cmp_eq_u32 s6, 0")
    if tag == "k1":
        srd_sel(p, SX, 16, 26, 983040)
        srd_sel(p, SK, 18, 28, 6291456)
        srd_sel(p, SV, 20, 30, 6291456)
        srd_sel(p, SWQ, 22, 32, 5242880)
    srd_sel(p, SWO, 24, 34, 5242880)
    srd(p, SWS, 14, 15, 0x10000000)
    if tag == "k2": srd(p, SOUT, 36, 37, 16*48*1280*2)
    p("""
    s_lshl_b32 s16, s7, 3
    s_add_u32 s16, s16, s8
    s_lshl_b32 s17, s9, 1
    s_lshr_b32 s10, s8, 2
    s_add_u32 s17, s17, s10
    s_and_b32 s18, s8, 3
    """)
    p("s_cmp_ge_u32 s79, 4")
    p(f"s_cbranch_scc1 L_loader_{tag}")
    return p

def k1():
    NSL = 4
    LX = 65536
    hd = head("k1")
    p = Prog()
    V_XR = 11; V_TR = 13; V_TV = 21; V_KR = 29
    T3 = 37
    FR = 40; ACC = 136; TMP = 232
    p(f"""
    s_mul_i32 s10, s3, 24576
    s_add_u32 s77, s10, {LX}
    s_lshl_b32 s22, s9, 2
    s_add_u32 s22, s22, s3
    v_and_b32 v{V_T0}, 1, v{V_G}
    v_lshlrev_b32 v{V_T0}, 2, v{V_T0}
    v_or_b32 v{V_F}, v{V_RR}, v{V_T0}
    v_lshrrev_b32 v{V_T0}, 1, v{V_I16}
    v_xor_b32 v{V_T0}, v{V_T0}, v{V_G}
    v_lshlrev_b32 v{V_T1}, 7, v{V_I16}
    v_add_u32 v{V_T1}, s77, v{V_T1}
    v_lshl_add_u32 v{V_XR}, v{V_T0}, 4, v{V_T1}
    v_xor_b32 v{V_T0}, 4, v{V_T0}
    v_lshl_add_u32 v{V_XR+1}, v{V_T0}, 4, v{V_T1}
    v_lshl_add_u32 v{V_T0}, v{V_G}, 3, v{V_RR}
    v_lshlrev_b32 v{V_T0}, 8, v{V_T0}
    v_lshl_add_u32 v{V_T0}, v{V_CC}, 3, v{V_T0}
    v_lshl_add_u32 v{V_T1}, v{V_G}, 2, v{V_RR}
    v_lshlrev_b32 v{V_T1}, 8, v{V_T1}
    v_lshl_add_u32 v{V_T1}, v{V_CC}, 3, v{V_T1}
    v_add_u32 v{V_T1}, s77, v{V_T1}
    """)
    for t in range(8):
        p(f"""
        v_xor_b32 v{TMP}, {t}, v{V_F}
        v_lshl_add_u32 v{V_TR+t}, v{TMP}, 5, v{V_T0}
        v_lshl_add_u32 v{V_TV+t}, v{TMP}, 5, v{V_T1}
        """)
    p(f"""
    v_lshrrev_b32 v{V_T0}, 1, v{V_G}
    v_xor_b32 v{V_T0}, v{V_T0}, v{V_I16}
    v_and_b32 v{V_T1}, 1, v{V_G}
    v_lshlrev_b32 v{V_T1}, 3, v{V_T1}
    v_lshl_add_u32 v{V_T1}, v{V_I16}, 8, v{V_T1}
    v_add_u32 v{V_T1}, s77, v{V_T1}
    """)
    for j in range(8):
        p(f"""
        v_xor_b32 v{TMP}, {2*j}, v{V_T0}
        v_lshl_add_u32 v{V_KR+j}, v{TMP}, 4, v{V_T1}
        """)
    p(f"""
    s_mul_i32 s10, s6, 48
    s_mul_i32 s11, s22, 3
    s_add_u32 s10, s10, s11
    s_lshl_b32 s10, s10, 7
    s_lshl_b32 s11, s16, 2
    s_add_u32 s10, s10, s11
    s_lshl_b32 s24, s10, 10
    s_add_u32 s25, s24, 131072
    s_add_u32 s26, s24, 262144
    s_mov_b32 s98, {f32bits(SCALE_LOG2E)}
    """)
    def run(items):
        for x in items:
            if callable(x): x()
            else: p(x)
    def reads(s):
        c, ks = s // 2, s % 2
        it = []
        fb = FR + (s % 2) * 44
        for u in range(3):
            it.append(f"ds_read_b128 {vr(fb + 32 + u*4)}, v{V_XR + ks} offset:{(c % NSL)*6144 + u*2048}")
        off0 = (c % NSL) * 16384 + ks * 8192
        for t in range(8):
            for hf in range(2):
                it.append(f"ds_read_b64_tr_b16 {vr(fb + t*4 + 2*hf, 2)}, v{V_TR+t} offset:{off0 + hf*1024}")
        return it
    def mfmas(s, order_u=False):
        it = []
        fb = FR + (s % 2) * 44
        idx = [(t, u) for u in range(3) for t in range(8)] if order_u else [(t, u) for t in range(8) for u in range(3)]
        for t, u in idx:
            a = ACC + (t*3+u)*4
            c = "0" if s == 0 else vr(a)
            it.append(f"v_mfma_f32_16x16x32_bf16 {vr(a)}, {vr(fb + t*4)}, {vr(fb + 32 + u*4)}, {c}")
        return it
    def KF(i): return 40 + 4*i if i < 11 else 128
    def QF(i): return 84 + 4*i if i < 11 else 132
    kreads = [f"ds_read_b64 {vr(KF(kt*4+T) + 2*hf, 2)}, v{V_KR + 2*T + hf} offset:{12288 + kt*4096}" for kt in range(3) for T in range(4) for hf in range(2)]
    p("s_barrier")
    stamp(p, 1)
    run(reads(0))
    for s in range(20):
        if s % 2 == 1:
            p.wait_lg(0)
            p("s_barrier")
        side = reads(s + 1) if s < 19 else kreads
        interleave(p, mfmas(s, order_u=(s == 19)), side, ratio=1)
    stamp(p, 2)
    ST = ACC
    VF = ACC + 40
    PFR = TMP
    AO = 40
    def cvtq(u):
        it = []
        for T in range(4):
            for k in range(4):
                a = ACC + ((2*T + k//2)*3 + u)*4 + 2*(k%2)
                it.append(f"v_cvt_pk_bf16_f32 v{QF(T*3+u) + k}, v{a}, v{a+1}")
        return it
    def st(u):
        it = []
        for T in range(4):
            for kt in range(3):
                d = ST + (kt*3+u)*4
                c = "0" if T == 0 else vr(d)
                it.append(f"v_mfma_f32_16x16x32_bf16 {vr(d)}, {vr(KF(kt*4+T))}, {vr(QF(T*3+u))}, {c}")
        return it
    def sm(u):
        it = []
        vals = [ST + (kt*3+u)*4 + r for kt in range(3) for r in range(4)]
        m, t2, sm_ = T3, T3+1, T3+2
        it.append(f"v_max3_f32 v{m}, v{vals[0]}, v{vals[1]}, v{vals[2]}")
        it.append(f"v_max3_f32 v{t2}, v{vals[3]}, v{vals[4]}, v{vals[5]}")
        it.append(f"v_max3_f32 v{m}, v{m}, v{vals[6]}, v{vals[7]}")
        it.append(f"v_max3_f32 v{t2}, v{t2}, v{vals[8]}, v{vals[9]}")
        it.append(f"v_max3_f32 v{m}, v{m}, v{vals[10]}, v{vals[11]}")
        it.append(f"v_max_f32 v{m}, v{m}, v{t2}")
        it += [f"v_mov_b32 v{t2}, v{m}", f"v_permlane16_swap_b32 v{m}, v{t2}", f"v_max_f32 v{m}, v{m}, v{t2}",
               f"v_mov_b32 v{t2}, v{m}", f"v_permlane32_swap_b32 v{m}, v{t2}", f"v_max_f32 v{m}, v{m}, v{t2}",
               f"v_mul_f32 v{m}, s98, v{m}"]
        for v in vals: it.append(f"v_fma_f32 v{v}, v{v}, s98, -v{m}")
        for v in vals: it.append(f"v_exp_f32 v{v}, v{v}")
        it.append(f"v_add_f32 v{sm_}, v{vals[0]}, v{vals[1]}")
        it.append(f"v_add_f32 v{t2}, v{vals[2]}, v{vals[3]}")
        for i in range(4, 12, 2):
            it.append(f"v_add_f32 v{sm_}, v{sm_}, v{vals[i]}")
            it.append(f"v_add_f32 v{t2}, v{t2}, v{vals[i+1]}")
        it.append(f"v_add_f32 v{sm_}, v{sm_}, v{t2}")
        it += [f"v_mov_b32 v{t2}, v{sm_}", f"v_permlane16_swap_b32 v{sm_}, v{t2}", f"v_add_f32 v{sm_}, v{sm_}, v{t2}",
               f"v_mov_b32 v{t2}, v{sm_}", f"v_permlane32_swap_b32 v{sm_}, v{t2}", f"v_add_f32 v{sm_}, v{sm_}, v{t2}",
               f"v_rcp_f32 v{sm_}, v{sm_}"]
        for v in vals: it.append(f"v_mul_f32 v{v}, v{v}, v{sm_}")
        for i in range(6): it.append(f"v_cvt_pk_bf16_f32 v{PFR + u*8 + i}, v{vals[2*i]}, v{vals[2*i+1]}")
        return it
    def pv(u):
        it = []
        for t in range(8):
            d = AO + (t*3+u)*4
            it.append(f"v_mfma_f32_16x16x32_bf16 {vr(d)}, {vr(VF + t*6)}, {vr(PFR + u*8)}, 0")
        for t in range(8):
            d = AO + (t*3+u)*4
            it.append(f"v_mfma_f32_16x16x16_bf16 {vr(d)}, {vr(VF + t*6 + 4, 2)}, {vr(PFR + u*8 + 4, 2)}, {vr(d)}")
        return it
    def cvto(u):
        it = []
        for T in range(4):
            r0 = AO + ((2*T)*3 + u)*4
            r1 = AO + ((2*T+1)*3 + u)*4
            it += [f"v_cvt_pk_bf16_f32 v{r0}, v{r0}, v{r0+1}", f"v_cvt_pk_bf16_f32 v{r0+1}, v{r0+2}, v{r0+3}",
                   f"v_cvt_pk_bf16_f32 v{r0+2}, v{r1}, v{r1+1}", f"v_cvt_pk_bf16_f32 v{r0+3}, v{r1+2}, v{r1+3}",
                   f"buffer_store_dwordx4 {vr(r0)}, v{V_L16}, s[{SWS}:{SWS+3}], s{24+u} offen offset:{T*1024}{O_ST}"]
        return it
    vreads = [f"ds_read_b64_tr_b16 {vr(VF + t*6 + 2*kp, 2)}, v{V_TV+t} offset:{kp*4096}" for t in range(8) for kp in range(3)]
    run(cvtq(0))
    interleave(p, st(0), cvtq(1), ratio=2)
    interleave(p, st(1), cvtq(2), ratio=2)
    p("s_barrier")
    s0 = sm(0)
    interleave(p, st(2), vreads + s0[:12], ratio=3)
    run(s0[12:])
    interleave(p, pv(0), sm(1), ratio=5)
    interleave(p, pv(1), sm(2) , ratio=5)
    run(cvto(0))
    interleave(p, pv(2), cvto(1), ratio=2)
    run(cvto(2))
    stamp_end(p, 0, 136)
    p("s_endpgm")
    comp = p

    p = Prog()
    p("L_loader_k1:")
    p("s_cmp_ge_u32 s79, 6")
    p("s_cbranch_scc1 L_kv")
    V_DA, V_DB, V_XD, V_PF = 11, 12, 13, 16
    p(f"""
    s_and_b32 s23, s79, 1
    v_lshlrev_b32 v{V_T0}, 1, v{V_G}
    v_xor_b32 v{V_T0}, v{V_T0}, v{V_I16}
    v_lshlrev_b32 v{V_T0}, 4, v{V_T0}
    v_lshl_add_u32 v{V_DA}, v{V_G}, 13, v{V_T0}
    v_xor_b32 v{V_DB}, 0x80, v{V_DA}
    v_lshrrev_b32 v{V_T0}, 3, v{V_LANE}
    v_mul_u32_u24 v{V_T0}, 1280, v{V_T0}
    v_and_b32 v{V_T1}, 7, v{V_LANE}
    v_xor_b32 v{V_T1}, v{V_T1}, v{V_G}
    v_lshl_add_u32 v{V_XD}, v{V_T1}, 4, v{V_T0}
    v_xor_b32 v{V_T1}, 4, v{V_T1}
    v_lshl_add_u32 v{V_XD+1}, v{V_T1}, 4, v{V_T0}
    s_lshl_b32 s24, s16, 8
    s_lshl_b32 s10, s23, 18
    s_add_u32 s24, s24, s10
    s_lshl_b32 s25, s23, 13
    s_lshl_b32 s22, s9, 2
    s_lshl_b32 s10, s23, 1
    s_add_u32 s22, s22, s10
    s_mul_i32 s26, s22, 61440
    s_mul_i32 s77, s23, 49152
    s_add_u32 s77, s77, {LX}
    s_mul_i32 s10, s9, 5
    s_lshr_b32 s10, s10, 1
    s_mul_i32 s11, s8, 5
    s_lshr_b32 s11, s11, 2
    s_add_u32 s72, s10, s11
    s_cmp_ge_u32 s72, 10
    s_cselect_b32 s10, 10, 0
    s_sub_u32 s72, s72, s10
    """)
    if not ROT: p("s_mov_b32 s72, 0")
    def chunk_loads(c):
        if c > 0:
            p("s_add_u32 s72, s72, 1\ns_cmp_ge_u32 s72, 10\ns_cselect_b32 s10, 10, 0\ns_sub_u32 s72, s72, s10")
        p("s_lshl_b32 s73, s72, 19\ns_add_u32 s73, s73, s24\ns_lshl_b32 s74, s72, 7\ns_add_u32 s74, s74, s26")
        for i in range(8):
            p(f"s_add_u32 m0, s25, {(c % NSL)*16384 + i*1024}")
            p(f"s_add_u32 s97, s73, {(4*i) * 8192}")
            p(f"buffer_load_dwordx4 v{V_DA if (i % 4) < 2 else V_DB}, s[{SWQ}:{SWQ+3}], s97 offen{NT_W} lds", tag=f"c{c}")
        for ww in range(2):
            for j in range(6):
                p(f"s_add_u32 m0, s77, {ww*24576 + (c % NSL)*6144 + j*1024}")
                p(f"s_add_u32 s97, s74, {ww*61440 + j * 10240}")
                p(f"buffer_load_dwordx4 v{V_XD + j % 2}, s[{SX}:{SX+3}], s97 offen{NT_X} lds", tag=f"c{c}")
    def pf_wo():
        p(f"""
        s_lshl_b32 s10, s5, 1
        s_add_u32 s10, s10, s23
        s_lshl_b32 s11, s7, 6
        s_add_u32 s10, s10, s11
        s_mul_i32 s75, s10, 20480
        v_lshlrev_b32 v{V_PF}, 7, v{V_LANE}
        v_add_u32 v{V_PF+1}, 8192, v{V_PF}
        v_add_u32 v{V_PF+2}, 16384, v{V_PF}
        v_cmp_lt_u32 vcc, 31, v{V_LANE}
        v_cndmask_b32 v{V_PF+2}, v{V_PF+2}, -1, vcc
        buffer_load_dword v{V_PF+4}, v{V_PF}, s[{SWO}:{SWO+3}], s75 offen{NT_PF}
        buffer_load_dword v{V_PF+5}, v{V_PF+1}, s[{SWO}:{SWO+3}], s75 offen{NT_PF}
        buffer_load_dword v{V_PF+6}, v{V_PF+2}, s[{SWO}:{SWO+3}], s75 offen{NT_PF}
        """)
    p(f"""
    s_lshl_b32 s10, s2, 7
    s_add_u32 s10, s10, {WS_F}
    v_mov_b32 v{V_PF}, 0
    buffer_store_dword v{V_PF}, v{V_PF}, s[{SWS}:{SWS+3}], s10 offen
    """)
    for c in range(DIST): chunk_loads(c)
    for c in range(10):
        p.wait_tag(f"c{c}"); p("s_barrier")
        if c + DIST < 10: chunk_loads(c + DIST)
        if c == PFWO: pf_wo()
    p("s_barrier")
    if PFWO == 10: pf_wo()
    p("s_barrier")
    if PFWO == 11: pf_wo()
    p("s_endpgm")
    load1 = p
    p = Prog()
    p("L_kv:")
    V_VA, V_VB, V_WR, V_KD = 11, 12, 13, 14
    RS = 32
    p(f"""
    s_and_b32 s23, s79, 1
    v_lshlrev_b32 v{V_T0}, 1, v{V_G}
    v_xor_b32 v{V_T0}, v{V_T0}, v{V_I16}
    v_lshlrev_b32 v{V_T0}, 4, v{V_T0}
    v_lshl_add_u32 v{V_VA}, v{V_G}, 8, v{V_T0}
    v_xor_b32 v{V_VB}, 0x80, v{V_VA}
    s_mul_i32 s77, s23, 49152
    s_add_u32 s77, s77, {LX}
    v_add_u32 v{V_WR}, s77, v{V_L16}
    v_xor_b32 v{V_T0}, v{V_G}, v{V_I16}
    v_lshlrev_b32 v{V_T0}, 4, v{V_T0}
    v_lshl_add_u32 v{V_KD}, v{V_G}, 8, v{V_T0}
    v_xor_b32 v{V_KD+1}, 0x40, v{V_KD}
    v_xor_b32 v{V_KD+2}, 0x80, v{V_KD}
    v_xor_b32 v{V_KD+3}, 0xc0, v{V_KD}
    s_lshl_b32 s22, s9, 2
    s_lshl_b32 s10, s23, 1
    s_add_u32 s22, s22, s10
    s_lshl_b32 s10, s22, 5
    s_add_u32 s10, s10, s16
    s_mul_i32 s24, s10, 12288
    s_add_u32 s25, s24, 4096
    s_add_u32 s26, s24, 8192
    s_add_u32 s27, s24, 393216
    s_add_u32 s28, s27, 4096
    s_add_u32 s29, s27, 8192
    """)
    kv = []
    for ww in range(2):
        kv += [f"buffer_load_dwordx4 {vr(RS + ww*96 + i*4)}, v{V_KD + i % 4}, s[{SK}:{SK+3}], s{24 + 3*ww + i//4} offen offset:{(i%4)*1024}{NT_KV}" for i in range(12)]
    for ww in range(2):
        kv += [f"buffer_load_dwordx4 {vr(RS + ww*96 + 48 + i*4)}, v{V_VA if i % 2 == 0 else V_VB}, s[{SV}:{SV+3}], s{24 + 3*ww + i//4} offen offset:{(i%4)*1024}{NT_KV}" for i in range(12)]
    nb = KV_END - KV_START
    per = (len(kv) + nb - 1) // nb
    for c in range(-1, 10):
        if c >= 0: p("s_barrier")
        if c >= KV_START:
            for x in kv[:per]: p(x)
            kv = kv[per:]
    for x in kv: p(x)
    for ww in range(2):
        for i in range(12):
            p(f"ds_write_b128 v{V_WR}, {vr(RS + ww*96 + i*4)} offset:{ww*24576 + 12288 + i*1024}")
    p.wait_lg(0)
    p("s_barrier")
    for ww in range(2):
        for i in range(12):
            p(f"ds_write_b128 v{V_WR}, {vr(RS + ww*96 + 48 + i*4)} offset:{ww*24576 + i*1024}")
    p.wait_lg(0)
    p("s_barrier")
    p("L_end_k1:")
    p("s_endpgm")
    load2 = p
    for q in (hd, comp, load1, load2): q.finalize()
    hd.ins = hd.ins + comp.ins + load1.ins + load2.ins
    return hd

def k2():
    NS = 5
    hd = head("k2")
    p = Prog()
    V_A = 11; V_B = 26; V_OUT = 29
    FR2 = 32; ACC2 = 96; D = 156
    p("""
    s_lshr_b32 s10, s3, 1
    s_and_b32 s11, s3, 1
    """)
    p(f"""
    v_lshl_add_u32 v{V_T0}, v{V_G}, 2, v{V_RR}
    v_mul_u32_u24 v{V_T0}, 320, v{V_T0}
    v_lshl_add_u32 v{V_T0}, v{V_CC}, 3, v{V_T0}
    v_and_b32 v{V_T1}, 1, v{V_G}
    s_mul_i32 s13, s11, 5
    """)
    for tt in range(5):
        p(f"""
        s_add_u32 s12, s13, {tt}
        v_xor_b32 v{V_T2}, s12, v{V_T1}
        v_lshl_add_u32 v{V_A+tt}, v{V_T2}, 5, v{V_T0}
        v_add_u32 v{V_A+5+tt}, 0x10000, v{V_A+tt}
        v_add_u32 v{V_A+10+tt}, 0x20000, v{V_A+tt}
        """)
    p(f"""
    s_mul_i32 s13, s10, 6144
    v_add_u32 v{V_B}, s13, v{V_L16}
    v_add_u32 v{V_B+1}, 0x10000, v{V_B}
    v_add_u32 v{V_B+2}, 0x20000, v{V_B}
    v_mul_u32_u24 v{V_OUT}, 2560, v{V_I16}
    v_lshl_add_u32 v{V_OUT}, v{V_G}, 3, v{V_OUT}
    s_lshl_b32 s13, s6, 3
    s_add_u32 s13, s13, s17
    s_lshl_b32 s13, s13, 2
    s_add_u32 s13, s13, s18
    s_lshl_b32 s13, s13, 4
    s_add_u32 s13, s13, s3
    s_mul_i32 s27, s13, 15360
    s_add_u32 s27, s27, {WS_P}
    s_mul_i32 s12, s7, 61440
    s_add_u32 s28, s27, s12
    s_mul_i32 s13, s17, 96
    s_mul_i32 s12, s10, 48
    s_add_u32 s13, s13, s12
    s_mul_i32 s29, s13, 2560
    s_mul_i32 s13, s6, 1280
    s_add_u32 s29, s29, s13
    s_mul_i32 s13, s18, 320
    s_add_u32 s29, s29, s13
    s_mul_i32 s13, s11, 160
    s_add_u32 s29, s29, s13
    """)
    def run(items):
        for x in items:
            if callable(x): x()
            else: p(x)
    def reads2(s):
        c, ks = s // 2, s % 2
        base = (c % NS) * 32768
        fb = FR2 + (s % 2) * 32
        it = []
        for u in range(3):
            if env("K2_NOB", "0") == "1" and s > 1: break
            off = base + (u*2 + ks) * 1024
            it.append(f"ds_read_b128 {vr(fb + 20 + u*4)}, v{V_B + off // 65536} offset:{off % 65536}")
        for tt in range(5):
            if env("K2_NOA", "0") == "1" and s > 1: break
            for hf in range(2):
                off = base + 12288 + ks*10240 + hf*5120
                it.append(f"ds_read_b64_tr_b16 {vr(fb + tt*4 + 2*hf, 2)}, v{V_A + 5*(off // 65536) + tt} offset:{off % 65536}")
        return it
    def mfmas2(s):
        fb = FR2 + (s % 2) * 32
        it = []
        for tt in range(5):
            for u in range(3):
                a = ACC2 + (tt*3+u)*4
                c = "0" if s == 0 else vr(a)
                it.append(f"v_mfma_f32_16x16x32_bf16 {vr(a)}, {vr(fb + tt*4)}, {vr(fb + 20 + u*4)}, {c}")
        return it
    p("s_barrier")
    stamp(p, 1)
    run(reads2(0))
    for s in range(32):
        if s % 2 == 1 and s < 31: p("s_barrier")
        side = reads2(s + 1) if s < 31 else []
        interleave(p, mfmas2(s), side, ratio=1)
    stamp(p, 2)
    p("s_nop 15")
    for q in range(4):
        p(f"s_cmp_eq_u32 s7, {q}")
        p(f"s_cbranch_scc1 L_skipq{q}")
        p(f"s_add_u32 s30, s28, {q*4096}")
        for i in range(4):
            tile = 4*q + i
            if tile < 15:
                p.raw(f"buffer_store_dwordx4 {vr(ACC2 + tile*4)}, v{V_L16}, s[{SWS}:{SWS+3}], s30 offen offset:{i*1024} sc1")
        p(f"L_skipq{q}:")
    for q in range(4):
        p(f"s_cmp_lg_u32 s7, {q}")
        p(f"s_cbranch_scc1 L_nown{q}")
        for i in range(4):
            tile = min(4*q + i, 14)
            for r in range(4):
                p.raw(f"v_mov_b32 v{FR2 + i*4 + r}, v{ACC2 + tile*4 + r}")
        p(f"L_nown{q}:")
    p("s_waitcnt vmcnt(0)")
    stamp(p, 3)
    p("s_barrier")
    p("s_barrier")
    stamp(p, 4)
    p("s_lshl_b32 s31, s7, 12")
    p("s_add_u32 s31, s31, s27")
    for jj in range(3):
        p(f"s_add_u32 s30, s7, {jj+1}\ns_and_b32 s30, s30, 3\ns_mul_i32 s30, s30, 61440\ns_add_u32 s30, s30, s31")
        for i in range(4):
            p(f"buffer_load_dwordx4 {vr(D + (jj*4+i)*4)}, v{V_L16}, s[{SWS}:{SWS+3}], s30 offen offset:{i*1024} sc1")
    for i in range(4):
        if i == 3:
            p("s_cmp_eq_u32 s7, 3")
            p("s_cbranch_scc1 L_fin")
        p(f"""
        s_lshl_b32 s13, s7, 2
        s_add_u32 s13, s13, {i}
        s_mul_i32 s12, s13, 11
        s_lshr_b32 s12, s12, 5
        s_mul_i32 s11, s12, 3
        s_sub_u32 s13, s13, s11
        s_mul_i32 s13, s13, 40960
        s_lshl_b32 s12, s12, 5
        s_add_u32 s13, s13, s12
        s_add_u32 s30, s29, s13
        """)
        b0 = FR2 + i*4
        b1, b2, b3 = [D + (j*4+i)*4 for j in range(3)]
        for r in range(4):
            p(f"v_add_f32 v{b0+r}, v{b0+r}, v{b1+r}")
            p(f"v_add_f32 v{b2+r}, v{b2+r}, v{b3+r}")
            p(f"v_add_f32 v{b0+r}, v{b0+r}, v{b2+r}")
        p(f"v_cvt_pk_bf16_f32 v{b1}, v{b0}, v{b0+1}")
        p(f"v_cvt_pk_bf16_f32 v{b1+1}, v{b0+2}, v{b0+3}")
        p(f"buffer_store_dwordx2 {vr(b1, 2)}, v{V_OUT}, s[{SOUT}:{SOUT+3}], s30 offen")
    p("L_fin:")
    stamp_end(p, 1, 60)
    p("s_endpgm")
    comp = p
    p = Prog()
    p("L_loader_k2:")
    V_WO = 11; V_FL = 16; V_FD = 18
    p("s_movk_i32 s12, 3277")
    for j in range(5):
        p(f"""
        v_add_u32 v{V_T0}, {64*j}, v{V_LANE}
        v_mul_u32_u24 v{V_T1}, s12, v{V_T0}
        v_lshrrev_b32 v{V_T1}, 16, v{V_T1}
        v_mul_u32_u24 v{V_T2}, 20, v{V_T1}
        v_sub_u32 v{V_T0}, v{V_T0}, v{V_T2}
        v_bfe_u32 v{V_T2}, v{V_T1}, 2, 1
        v_lshlrev_b32 v{V_T2}, 1, v{V_T2}
        v_xor_b32 v{V_T0}, v{V_T0}, v{V_T2}
        v_lshlrev_b32 v{V_T0}, 4, v{V_T0}
        v_mul_u32_u24 v{V_T1}, 1280, v{V_T1}
        v_add_u32 v{V_WO+j}, v{V_T0}, v{V_T1}
        """)
    p(f"""
    s_lshr_b32 s10, s3, 1
    s_and_b32 s11, s3, 1
    s_mul_i32 s13, s6, 48
    s_mul_i32 s12, s17, 6
    s_add_u32 s13, s13, s12
    s_mul_i32 s12, s10, 3
    s_add_u32 s13, s13, s12
    s_lshl_b32 s13, s13, 7
    s_lshl_b32 s12, s7, 5
    s_add_u32 s13, s13, s12
    s_add_u32 s13, s13, s11
    s_lshl_b32 s24, s13, 10
    s_mul_i32 s13, s10, 6
    s_add_u32 s13, s13, s11
    s_lshl_b32 s25, s13, 10
    s_lshl_b32 s13, s7, 10
    s_lshl_b32 s12, s3, 4
    s_add_u32 s13, s13, s12
    s_mul_i32 s13, s13, 1280
    s_mul_i32 s12, s18, 320
    s_add_u32 s26, s13, s12
    s_mul_i32 s13, s3, 5120
    s_add_u32 s27, s13, 12288
    s_lshl_b32 s72, s18, 2
    s_lshl_b32 s13, s17, 1
    s_add_u32 s72, s72, s13
    s_and_b32 s72, s72, 15
    """)
    if not ROT2: p("s_mov_b32 s72, 0")
    p(f"""
    s_lshl_b32 s10, s2, 7
    s_add_u32 s10, s10, {WS_F}
    v_mov_b32 v{V_FL}, s10
    s_and_b32 s10, s2, 0xfc
    s_lshl_b32 s10, s10, 7
    s_add_u32 s10, s10, {WS_F}
    v_and_b32 v{V_T0}, 3, v{V_LANE}
    v_lshlrev_b32 v{V_T0}, 7, v{V_T0}
    v_add_u32 v{V_FL+1}, s10, v{V_T0}
    """)
    def dma(c):
        slot = c % NS
        p(f"s_add_u32 s73, s72, {c}\ns_and_b32 s73, s73, 15")
        p("s_mul_i32 s74, s73, 81920\ns_add_u32 s74, s74, s26")
        p("s_lshl_b32 s73, s73, 11\ns_add_u32 s73, s73, s24")
        for i in range(3):
            p(f"s_add_u32 m0, s25, {slot*32768 + i*2048}")
            p(f"s_add_u32 s97, s73, {WS_O + i*131072}")
            p(f"buffer_load_dwordx4 v{V_L16}, s[{SWS}:{SWS+3}], s97 offen lds", tag=f"c{c}")
        for j in range(5):
            p(f"s_add_u32 m0, s27, {slot*32768 + j*1024}")
            p("s_nop 0")
            p(f"buffer_load_dwordx4 v{V_WO+j}, s[{SWO}:{SWO+3}], s74 offen{NT_WO} lds", tag=f"c{c}")
    nxt = 0
    for c in range(DIST2): dma(c); nxt += 1
    for c in range(16):
        p.wait_tag(f"c{c}"); p("s_barrier")
        if nxt <= min(15, c + DIST2): dma(nxt); nxt += 1
    p("s_cmp_lg_u32 s79, 4")
    p("s_cbranch_scc1 L_end_k2")
    p.raw("s_barrier")
    p.raw(f"v_mov_b32 v{V_FD}, 1")
    p.raw(f"buffer_store_dword v{V_FD}, v{V_FL}, s[{SWS}:{SWS+3}], 0 offen sc1")
    p.raw(f"s_mov_b32 s76, {SPIN_MAX}")
    p.raw("L_poll2:")
    p.raw(f"buffer_load_dword v{V_FD}, v{V_FL+1}, s[{SWS}:{SWS+3}], 0 offen sc1")
    p.raw("s_waitcnt vmcnt(0)")
    p.raw(f"v_cmp_ne_u32 vcc, 1, v{V_FD}")
    p.raw("s_nop 4")
    p.raw("s_cmp_eq_u64 vcc, 0")
    p.raw("s_cbranch_scc1 L_done2")
    p.raw(f"s_sleep {SLEEP}")
    p.raw("s_sub_u32 s76, s76, 1")
    p.raw("s_cmp_lg_u32 s76, 0")
    p.raw("s_cbranch_scc1 L_poll2")
    p.raw("L_done2:")
    p.raw("s_barrier")
    p("L_end_k2:")
    p("s_endpgm")
    load = p
    for q in (hd, comp, load): q.finalize()
    hd.ins = hd.ins + comp.ins + load.ins
    return hd

def kd(name, vgpr, sgpr=100):
    return f""".amdhsa_kernel {name}
  .amdhsa_next_free_vgpr {vgpr}
  .amdhsa_next_free_sgpr {sgpr}
  .amdhsa_accum_offset {vgpr}
  .amdhsa_group_segment_fixed_size 0
  .amdhsa_kernarg_size 104
  .amdhsa_user_sgpr_count 2
  .amdhsa_user_sgpr_kernarg_segment_ptr 1
  .amdhsa_system_sgpr_workgroup_id_x 1
.end_amdhsa_kernel
"""
def build(out):
    hdr = open("cdna_kernels/" + NAME + ".s.ref").read().split("; Override launch")[0]
    s = hdr
    s += "; @launch kernel=k1_kernel grid=(256,1,1) block=(512,1,1) lds=163840\n"
    s += "; @launch kernel=k2_kernel grid=(256,1,1) block=(512,1,1) lds=163840\n"
    s += '.amdgcn_target "amdgcn-amd-amdhsa--gfx950"\n.text\n'
    for nm, f in (("k1_kernel", k1), ("k2_kernel", k2)):
        s += f".globl {nm}\n.p2align 8\n.type {nm},@function\n{nm}:\n" + f().text()
    s += '.section .rodata,"a"\n.p2align 6\n'
    s += kd("k1_kernel", 256) + ".p2align 6\n" + kd("k2_kernel", 256)
    open(out, "w").write(s)
if __name__ == "__main__":
    if len(sys.argv) > 2 and sys.argv[2] == "stamp": STAMP = True
    build(sys.argv[1])
```

```python
import sys, math, os, struct
from asmlib import *
NAME = "concat_heads__mha_block_cached__gqa_block_cached__near_ridge"
WS_O = 0
WS_P = 16 << 20
WS_F = 48 << 20
WS_STAMP = 64 << 20
SCALE_LOG2E = (128 ** -0.5) * math.log2(math.e)
def f32bits(x): return struct.unpack('<I', struct.pack('<f', x))[0]
def vr(b, n=4): return f"v[{b}:{b+n-1}]"
def env(k, d): return os.environ.get(k, d)
STAMP = False
ROT = env("ROT", "0") == "1"
ROT2 = env("ROT2", "1") == "1"
NT_W = " nt" if env("NT_W", "0") == "1" else ""
NT_X = " nt" if env("NT_X", "0") == "1" else ""
NT_KV = " nt" if env("NT_KV", "0") == "1" else ""
NT_WO = " nt" if env("NT_WO", "0") == "1" else ""
NT_PF = " nt" if env("NT_PF", "0") == "1" else ""
O_ST = env("O_ST", " sc0 sc1")
DIST = int(env("DIST", "2"))
DIST2 = int(env("DIST2", "2"))
KV_START = int(env("KV_START", "0"))
KV_END = int(env("KV_END", "8"))
PFWO = int(env("PFWO", "10"))
SLEEP = int(env("SLEEP", "4"))
SPIN_MAX = 200000
SX, SK, SV, SWQ, SWS, SWO, SOUT = 40, 44, 48, 52, 56, 60, 64
V_LANE, V_G, V_I16, V_RR, V_CC, V_F, V_T0, V_T1, V_T2, V_L16 = 1, 2, 3, 4, 5, 6, 7, 8, 9, 10

def srd(p, d, lo, hi, size):
    p(f"s_mov_b32 s{d}, s{lo}\ns_mov_b32 s{d+1}, s{hi}\ns_mov_b32 s{d+2}, {size}\ns_mov_b32 s{d+3}, 0x20000")
def srd_sel(p, d, a, b, size):
    p(f"s_cselect_b32 s{d}, s{a}, s{b}\ns_cselect_b32 s{d+1}, s{a+1}, s{b+1}\ns_mov_b32 s{d+2}, {size}\ns_mov_b32 s{d+3}, 0x20000")
def stamp(p, slot):
    if STAMP: p(f"s_memrealtime s[{80+2*slot}:{81+2*slot}]")
def stamp_end(p, kidx, vt):
    if STAMP and env("DBGSTAMP", "0") == "1":
        p("s_waitcnt vmcnt(0)")
        stamp(p, 6)
        p("s_waitcnt lgkmcnt(0)")
        p("s_and_b32 s96, s2, 0x39")
        p("s_or_b32 s96, s96, s3")
        p("s_cmp_lg_u32 s96, 0")
        p(f"s_cbranch_scc1 L_nost{kidx}")
        p(f"s_sub_u32 s68, s38, {512*kidx}\ns_subb_u32 s69, s39, 0\ns_mov_b32 s70, 256\ns_mov_b32 s71, 0x20000")
        p("s_not_b32 s80, s80")
        p(f"v_mov_b32 v{vt+8}, 0")
        for i in range(7):
            p.raw(f"v_mov_b32 v{vt+i}, s{80+2*i}")
        for i in range(7):
            p.raw(f"buffer_atomic_umax v{vt+i}, v{vt+8}, s[68:71], 0 offen offset:{kidx*32 + i*4}")
        p(f"L_nost{kidx}:")
        return
    if STAMP:
        p("s_waitcnt vmcnt(0)")
        stamp(p, 6)
        p("s_waitcnt lgkmcnt(0)")
        p(f"s_lshl_b32 s96, s2, 2\ns_add_u32 s96, s96, s3\ns_lshl_b32 s96, s96, 5\ns_add_u32 s96, s96, {WS_STAMP + kidx*65536}")
        for i in range(8): p(f"v_mov_b32 v{vt+i}, s{80+2*i}")
        p(f"""
        v_mov_b32 v{vt+8}, 0
        buffer_store_dwordx4 v[{vt}:{vt+3}], v{vt+8}, s[{SWS}:{SWS+3}], s96 offen
        buffer_store_dwordx4 v[{vt+4}:{vt+7}], v{vt+8}, s[{SWS}:{SWS+3}], s96 offen offset:16
        """)

def head(tag):
    p = Prog()
    p("s_cmp_ge_u32 s2, 256")
    p(f"s_cbranch_scc1 L_end_{tag}")
    if STAMP:
        for i in range(80, 96): p(f"s_mov_b32 s{i}, 0")
    stamp(p, 0)
    p("""
    s_load_dwordx16 s[16:31], s[0:1], 0
    s_load_dwordx8 s[32:39], s[0:1], 64
    s_load_dwordx2 s[14:15], s[0:1], 96
    """)
    p(f"""
    v_and_b32 v{V_LANE}, 63, v0
    v_lshrrev_b32 v{V_T0}, 6, v0
    v_lshrrev_b32 v{V_G}, 4, v{V_LANE}
    v_readfirstlane_b32 s79, v{V_T0}
    v_and_b32 v{V_I16}, 15, v0
    v_bfe_u32 v{V_RR}, v0, 2, 2
    v_and_b32 v{V_CC}, 3, v0
    v_lshlrev_b32 v{V_L16}, 4, v{V_LANE}
    s_and_b32 s3, s79, 3
    s_and_b32 s4, s2, 7
    s_lshr_b32 s5, s2, 3
    s_lshr_b32 s6, s4, 2
    s_and_b32 s7, s4, 3
    s_lshr_b32 s8, s5, 2
    s_and_b32 s9, s5, 3
    """)
    p("s_waitcnt lgkmcnt(0)")
    p("s_cmp_eq_u32 s6, 0")
    if tag == "k1":
        srd_sel(p, SX, 16, 26, 983040)
        srd_sel(p, SK, 18, 28, 6291456)
        srd_sel(p, SV, 20, 30, 6291456)
        srd_sel(p, SWQ, 22, 32, 5242880)
    srd_sel(p, SWO, 24, 34, 5242880)
    srd(p, SWS, 14, 15, 0x10000000)
    if tag == "k2": srd(p, SOUT, 36, 37, 16*48*1280*2)
    p("""
    s_lshl_b32 s16, s7, 3
    s_add_u32 s16, s16, s8
    s_lshl_b32 s17, s9, 1
    s_lshr_b32 s10, s8, 2
    s_add_u32 s17, s17, s10
    s_and_b32 s18, s8, 3
    """)
    p("s_cmp_ge_u32 s79, 4")
    p(f"s_cbranch_scc1 L_loader_{tag}")
    return p

def k1():
    NSL = 4
    LX = 65536
    hd = head("k1")
    p = Prog()
    V_XR = 11; V_TR = 13; V_TV = 21; V_KR = 29
    T3 = 37
    FR = 40; ACC = 136; TMP = 232
    p(f"""
    s_mul_i32 s10, s3, 24576
    s_add_u32 s77, s10, {LX}
    s_lshl_b32 s22, s9, 2
    s_add_u32 s22, s22, s3
    v_and_b32 v{V_T0}, 1, v{V_G}
    v_lshlrev_b32 v{V_T0}, 2, v{V_T0}
    v_or_b32 v{V_F}, v{V_RR}, v{V_T0}
    v_lshrrev_b32 v{V_T0}, 1, v{V_I16}
    v_xor_b32 v{V_T0}, v{V_T0}, v{V_G}
    v_lshlrev_b32 v{V_T1}, 7, v{V_I16}
    v_add_u32 v{V_T1}, s77, v{V_T1}
    v_lshl_add_u32 v{V_XR}, v{V_T0}, 4, v{V_T1}
    v_xor_b32 v{V_T0}, 4, v{V_T0}
    v_lshl_add_u32 v{V_XR+1}, v{V_T0}, 4, v{V_T1}
    v_lshl_add_u32 v{V_T0}, v{V_G}, 3, v{V_RR}
    v_lshlrev_b32 v{V_T0}, 8, v{V_T0}
    v_lshl_add_u32 v{V_T0}, v{V_CC}, 3, v{V_T0}
    v_lshl_add_u32 v{V_T1}, v{V_G}, 2, v{V_RR}
    v_lshlrev_b32 v{V_T1}, 8, v{V_T1}
    v_lshl_add_u32 v{V_T1}, v{V_CC}, 3, v{V_T1}
    v_add_u32 v{V_T1}, s77, v{V_T1}
    """)
    for t in range(8):
        p(f"""
        v_xor_b32 v{TMP}, {t}, v{V_F}
        v_lshl_add_u32 v{V_TR+t}, v{TMP}, 5, v{V_T0}
        v_lshl_add_u32 v{V_TV+t}, v{TMP}, 5, v{V_T1}
        """)
    p(f"""
    v_lshrrev_b32 v{V_T0}, 1, v{V_G}
    v_xor_b32 v{V_T0}, v{V_T0}, v{V_I16}
    v_and_b32 v{V_T1}, 1, v{V_G}
    v_lshlrev_b32 v{V_T1}, 3, v{V_T1}
    v_lshl_add_u32 v{V_T1}, v{V_I16}, 8, v{V_T1}
    v_add_u32 v{V_T1}, s77, v{V_T1}
    """)
    for j in range(8):
        p(f"""
        v_xor_b32 v{TMP}, {2*j}, v{V_T0}
        v_lshl_add_u32 v{V_KR+j}, v{TMP}, 4, v{V_T1}
        """)
    p(f"""
    s_mul_i32 s10, s6, 48
    s_mul_i32 s11, s22, 3
    s_add_u32 s10, s10, s11
    s_lshl_b32 s10, s10, 7
    s_lshl_b32 s11, s16, 2
    s_add_u32 s10, s10, s11
    s_lshl_b32 s24, s10, 10
    s_add_u32 s25, s24, 131072
    s_add_u32 s26, s24, 262144
    s_mov_b32 s98, {f32bits(SCALE_LOG2E)}
    """)
    def run(items):
        for x in items:
            if callable(x): x()
            else: p(x)
    def reads(s):
        c, ks = s // 2, s % 2
        it = []
        fb = FR + (s % 2) * 44
        for u in range(3):
            it.append(f"ds_read_b128 {vr(fb + 32 + u*4)}, v{V_XR + ks} offset:{(c % NSL)*6144 + u*2048}")
        off0 = (c % NSL) * 16384 + ks * 8192
        for t in range(8):
            for hf in range(2):
                it.append(f"ds_read_b64_tr_b16 {vr(fb + t*4 + 2*hf, 2)}, v{V_TR+t} offset:{off0 + hf*1024}")
        return it
    def mfmas(s, order_u=False):
        it = []
        fb = FR + (s % 2) * 44
        idx = [(t, u) for u in range(3) for t in range(8)] if order_u else [(t, u) for t in range(8) for u in range(3)]
        for t, u in idx:
            a = ACC + (t*3+u)*4
            c = "0" if s == 0 else vr(a)
            it.append(f"v_mfma_f32_16x16x32_bf16 {vr(a)}, {vr(fb + t*4)}, {vr(fb + 32 + u*4)}, {c}")
        return it
    def KF(i): return 40 + 4*i if i < 11 else 128
    def QF(i): return 84 + 4*i if i < 11 else 132
    kreads = [f"ds_read_b64 {vr(KF(kt*4+T) + 2*hf, 2)}, v{V_KR + 2*T + hf} offset:{12288 + kt*4096}" for kt in range(3) for T in range(4) for hf in range(2)]
    p("s_barrier")
    stamp(p, 1)
    run(reads(0))
    for s in range(20):
        if s % 2 == 1:
            p.wait_lg(0)
            p("s_barrier")
        side = reads(s + 1) if s < 19 else kreads
        interleave(p, mfmas(s, order_u=(s == 19)), side, ratio=1)
    stamp(p, 2)
    ST = ACC
    VF = ACC + 40
    PFR = TMP
    AO = 40
    def cvtq(u):
        it = []
        for T in range(4):
            for k in range(4):
                a = ACC + ((2*T + k//2)*3 + u)*4 + 2*(k%2)
                it.append(f"v_cvt_pk_bf16_f32 v{QF(T*3+u) + k}, v{a}, v{a+1}")
        return it
    def st(u):
        it = []
        for T in range(4):
            for kt in range(3):
                d = ST + (kt*3+u)*4
                c = "0" if T == 0 else vr(d)
                it.append(f"v_mfma_f32_16x16x32_bf16 {vr(d)}, {vr(KF(kt*4+T))}, {vr(QF(T*3+u))}, {c}")
        return it
    def sm(u):
        it = []
        vals = [ST + (kt*3+u)*4 + r for kt in range(3) for r in range(4)]
        m, t2, sm_ = T3, T3+1, T3+2
        it.append(f"v_max3_f32 v{m}, v{vals[0]}, v{vals[1]}, v{vals[2]}")
        it.append(f"v_max3_f32 v{t2}, v{vals[3]}, v{vals[4]}, v{vals[5]}")
        it.append(f"v_max3_f32 v{m}, v{m}, v{vals[6]}, v{vals[7]}")
        it.append(f"v_max3_f32 v{t2}, v{t2}, v{vals[8]}, v{vals[9]}")
        it.append(f"v_max3_f32 v{m}, v{m}, v{vals[10]}, v{vals[11]}")
        it.append(f"v_max_f32 v{m}, v{m}, v{t2}")
        it += [f"v_mov_b32 v{t2}, v{m}", f"v_permlane16_swap_b32 v{m}, v{t2}", f"v_max_f32 v{m}, v{m}, v{t2}",
               f"v_mov_b32 v{t2}, v{m}", f"v_permlane32_swap_b32 v{m}, v{t2}", f"v_max_f32 v{m}, v{m}, v{t2}",
               f"v_mul_f32 v{m}, s98, v{m}"]
        for v in vals: it.append(f"v_fma_f32 v{v}, v{v}, s98, -v{m}")
        for v in vals: it.append(f"v_exp_f32 v{v}, v{v}")
        it.append(f"v_add_f32 v{sm_}, v{vals[0]}, v{vals[1]}")
        it.append(f"v_add_f32 v{t2}, v{vals[2]}, v{vals[3]}")
        for i in range(4, 12, 2):
            it.append(f"v_add_f32 v{sm_}, v{sm_}, v{vals[i]}")
            it.append(f"v_add_f32 v{t2}, v{t2}, v{vals[i+1]}")
        it.append(f"v_add_f32 v{sm_}, v{sm_}, v{t2}")
        it += [f"v_mov_b32 v{t2}, v{sm_}", f"v_permlane16_swap_b32 v{sm_}, v{t2}", f"v_add_f32 v{sm_}, v{sm_}, v{t2}",
               f"v_mov_b32 v{t2}, v{sm_}", f"v_permlane32_swap_b32 v{sm_}, v{t2}", f"v_add_f32 v{sm_}, v{sm_}, v{t2}",
               f"v_rcp_f32 v{sm_}, v{sm_}"]
        for v in vals: it.append(f"v_mul_f32 v{v}, v{v}, v{sm_}")
        for i in range(6): it.append(f"v_cvt_pk_bf16_f32 v{PFR + u*8 + i}, v{vals[2*i]}, v{vals[2*i+1]}")
        return it
    def pv(u):
        it = []
        for t in range(8):
            d = AO + (t*3+u)*4
            it.append(f"v_mfma_f32_16x16x32_bf16 {vr(d)}, {vr(VF + t*6)}, {vr(PFR + u*8)}, 0")
        for t in range(8):
            d = AO + (t*3+u)*4
            it.append(f"v_mfma_f32_16x16x16_bf16 {vr(d)}, {vr(VF + t*6 + 4, 2)}, {vr(PFR + u*8 + 4, 2)}, {vr(d)}")
        return it
    def cvto(u):
        it = []
        for T in range(4):
            r0 = AO + ((2*T)*3 + u)*4
            r1 = AO + ((2*T+1)*3 + u)*4
            it += [f"v_cvt_pk_bf16_f32 v{r0}, v{r0}, v{r0+1}", f"v_cvt_pk_bf16_f32 v{r0+1}, v{r0+2}, v{r0+3}",
                   f"v_cvt_pk_bf16_f32 v{r0+2}, v{r1}, v{r1+1}", f"v_cvt_pk_bf16_f32 v{r0+3}, v{r1+2}, v{r1+3}",
                   f"buffer_store_dwordx4 {vr(r0)}, v{V_L16}, s[{SWS}:{SWS+3}], s{24+u} offen offset:{T*1024}{O_ST}"]
        return it
    vreads = [f"ds_read_b64_tr_b16 {vr(VF + t*6 + 2*kp, 2)}, v{V_TV+t} offset:{kp*4096}" for t in range(8) for kp in range(3)]
    run(cvtq(0))
    interleave(p, st(0), cvtq(1), ratio=2)
    interleave(p, st(1), cvtq(2), ratio=2)
    p("s_barrier")
    s0 = sm(0)
    interleave(p, st(2), vreads + s0[:12], ratio=3)
    run(s0[12:])
    interleave(p, pv(0), sm(1), ratio=5)
    interleave(p, pv(1), sm(2) , ratio=5)
    run(cvto(0))
    interleave(p, pv(2), cvto(1), ratio=2)
    run(cvto(2))
    stamp_end(p, 0, 136)
    p("s_endpgm")
    comp = p

    p = Prog()
    p("L_loader_k1:")
    p("s_cmp_ge_u32 s79, 6")
    p("s_cbranch_scc1 L_kv")
    V_DA, V_DB, V_XD, V_PF = 11, 12, 13, 16
    p(f"""
    s_and_b32 s23, s79, 1
    v_lshlrev_b32 v{V_T0}, 1, v{V_G}
    v_xor_b32 v{V_T0}, v{V_T0}, v{V_I16}
    v_lshlrev_b32 v{V_T0}, 4, v{V_T0}
    v_lshl_add_u32 v{V_DA}, v{V_G}, 13, v{V_T0}
    v_xor_b32 v{V_DB}, 0x80, v{V_DA}
    v_lshrrev_b32 v{V_T0}, 3, v{V_LANE}
    v_mul_u32_u24 v{V_T0}, 1280, v{V_T0}
    v_and_b32 v{V_T1}, 7, v{V_LANE}
    v_xor_b32 v{V_T1}, v{V_T1}, v{V_G}
    v_lshl_add_u32 v{V_XD}, v{V_T1}, 4, v{V_T0}
    v_xor_b32 v{V_T1}, 4, v{V_T1}
    v_lshl_add_u32 v{V_XD+1}, v{V_T1}, 4, v{V_T0}
    s_lshl_b32 s24, s16, 8
    s_lshl_b32 s10, s23, 18
    s_add_u32 s24, s24, s10
    s_lshl_b32 s25, s23, 13
    s_lshl_b32 s22, s9, 2
    s_lshl_b32 s10, s23, 1
    s_add_u32 s22, s22, s10
    s_mul_i32 s26, s22, 61440
    s_mul_i32 s77, s23, 49152
    s_add_u32 s77, s77, {LX}
    s_mul_i32 s10, s9, 5
    s_lshr_b32 s10, s10, 1
    s_mul_i32 s11, s8, 5
    s_lshr_b32 s11, s11, 2
    s_add_u32 s72, s10, s11
    s_cmp_ge_u32 s72, 10
    s_cselect_b32 s10, 10, 0
    s_sub_u32 s72, s72, s10
    """)
    if not ROT: p("s_mov_b32 s72, 0")
    def chunk_loads(c):
        if c > 0:
            p("s_add_u32 s72, s72, 1\ns_cmp_ge_u32 s72, 10\ns_cselect_b32 s10, 10, 0\ns_sub_u32 s72, s72, s10")
        p("s_lshl_b32 s73, s72, 19\ns_add_u32 s73, s73, s24\ns_lshl_b32 s74, s72, 7\ns_add_u32 s74, s74, s26")
        for i in range(8):
            p(f"s_add_u32 m0, s25, {(c % NSL)*16384 + i*1024}")
            p(f"s_add_u32 s97, s73, {(4*i) * 8192}")
            p(f"buffer_load_dwordx4 v{V_DA if (i % 4) < 2 else V_DB}, s[{SWQ}:{SWQ+3}], s97 offen{NT_W} lds", tag=f"c{c}")
        for ww in range(2):
            for j in range(6):
                p(f"s_add_u32 m0, s77, {ww*24576 + (c % NSL)*6144 + j*1024}")
                p(f"s_add_u32 s97, s74, {ww*61440 + j * 10240}")
                p(f"buffer_load_dwordx4 v{V_XD + j % 2}, s[{SX}:{SX+3}], s97 offen{NT_X} lds", tag=f"c{c}")
    def pf_wo():
        p(f"""
        s_lshl_b32 s10, s5, 1
        s_add_u32 s10, s10, s23
        s_lshl_b32 s11, s7, 6
        s_add_u32 s10, s10, s11
        s_mul_i32 s75, s10, 20480
        v_lshlrev_b32 v{V_PF}, 7, v{V_LANE}
        v_add_u32 v{V_PF+1}, 8192, v{V_PF}
        v_add_u32 v{V_PF+2}, 16384, v{V_PF}
        v_cmp_lt_u32 vcc, 31, v{V_LANE}
        v_cndmask_b32 v{V_PF+2}, v{V_PF+2}, -1, vcc
        buffer_load_dword v{V_PF+4}, v{V_PF}, s[{SWO}:{SWO+3}], s75 offen{NT_PF}
        buffer_load_dword v{V_PF+5}, v{V_PF+1}, s[{SWO}:{SWO+3}], s75 offen{NT_PF}
        buffer_load_dword v{V_PF+6}, v{V_PF+2}, s[{SWO}:{SWO+3}], s75 offen{NT_PF}
        """)
    p(f"""
    s_lshl_b32 s10, s2, 7
    s_add_u32 s10, s10, {WS_F}
    v_mov_b32 v{V_PF}, 0
    buffer_store_dword v{V_PF}, v{V_PF}, s[{SWS}:{SWS+3}], s10 offen
    """)
    for c in range(DIST): chunk_loads(c)
    for c in range(10):
        p.wait_tag(f"c{c}"); p("s_barrier")
        if c + DIST < 10: chunk_loads(c + DIST)
        if c == PFWO: pf_wo()
    p("s_barrier")
    if PFWO == 10: pf_wo()
    p("s_barrier")
    if PFWO == 11: pf_wo()
    p("s_endpgm")
    load1 = p
    p = Prog()
    p("L_kv:")
    V_VA, V_VB, V_WR, V_KD = 11, 12, 13, 14
    RS = 32
    p(f"""
    s_and_b32 s23, s79, 1
    v_lshlrev_b32 v{V_T0}, 1, v{V_G}
    v_xor_b32 v{V_T0}, v{V_T0}, v{V_I16}
    v_lshlrev_b32 v{V_T0}, 4, v{V_T0}
    v_lshl_add_u32 v{V_VA}, v{V_G}, 8, v{V_T0}
    v_xor_b32 v{V_VB}, 0x80, v{V_VA}
    s_mul_i32 s77, s23, 49152
    s_add_u32 s77, s77, {LX}
    v_add_u32 v{V_WR}, s77, v{V_L16}
    v_xor_b32 v{V_T0}, v{V_G}, v{V_I16}
    v_lshlrev_b32 v{V_T0}, 4, v{V_T0}
    v_lshl_add_u32 v{V_KD}, v{V_G}, 8, v{V_T0}
    v_xor_b32 v{V_KD+1}, 0x40, v{V_KD}
    v_xor_b32 v{V_KD+2}, 0x80, v{V_KD}
    v_xor_b32 v{V_KD+3}, 0xc0, v{V_KD}
    s_lshl_b32 s22, s9, 2
    s_lshl_b32 s10, s23, 1
    s_add_u32 s22, s22, s10
    s_lshl_b32 s10, s22, 5
    s_add_u32 s10, s10, s16
    s_mul_i32 s24, s10, 12288
    s_add_u32 s25, s24, 4096
    s_add_u32 s26, s24, 8192
    s_add_u32 s27, s24, 393216
    s_add_u32 s28, s27, 4096
    s_add_u32 s29, s27, 8192
    """)
    kv = []
    for ww in range(2):
        kv += [f"buffer_load_dwordx4 {vr(RS + ww*96 + i*4)}, v{V_KD + i % 4}, s[{SK}:{SK+3}], s{24 + 3*ww + i//4} offen offset:{(i%4)*1024}{NT_KV}" for i in range(12)]
    for ww in range(2):
        kv += [f"buffer_load_dwordx4 {vr(RS + ww*96 + 48 + i*4)}, v{V_VA if i % 2 == 0 else V_VB}, s[{SV}:{SV+3}], s{24 + 3*ww + i//4} offen offset:{(i%4)*1024}{NT_KV}" for i in range(12)]
    nb = KV_END - KV_START
    per = (len(kv) + nb - 1) // nb
    for c in range(-1, 10):
        if c >= 0: p("s_barrier")
        if c >= KV_START:
            for x in kv[:per]: p(x)
            kv = kv[per:]
    for x in kv: p(x)
    for ww in range(2):
        for i in range(12):
            p(f"ds_write_b128 v{V_WR}, {vr(RS + ww*96 + i*4)} offset:{ww*24576 + 12288 + i*1024}")
    p.wait_lg(0)
    p("s_barrier")
    for ww in range(2):
        for i in range(12):
            p(f"ds_write_b128 v{V_WR}, {vr(RS + ww*96 + 48 + i*4)} offset:{ww*24576 + i*1024}")
    p.wait_lg(0)
    p("s_barrier")
    p("L_end_k1:")
    p("s_endpgm")
    load2 = p
    for q in (hd, comp, load1, load2): q.finalize()
    hd.ins = hd.ins + comp.ins + load1.ins + load2.ins
    return hd

def k2():
    NS = 5
    hd = head("k2")
    p = Prog()
    V_A = 11; V_B = 26; V_OUT = 29
    FR2 = 32; ACC2 = 96; D = 156
    p("""
    s_lshr_b32 s10, s3, 1
    s_and_b32 s11, s3, 1
    """)
    p(f"""
    v_lshl_add_u32 v{V_T0}, v{V_G}, 2, v{V_RR}
    v_mul_u32_u24 v{V_T0}, 320, v{V_T0}
    v_lshl_add_u32 v{V_T0}, v{V_CC}, 3, v{V_T0}
    v_and_b32 v{V_T1}, 1, v{V_G}
    s_mul_i32 s13, s11, 5
    """)
    for tt in range(5):
        p(f"""
        s_add_u32 s12, s13, {tt}
        v_xor_b32 v{V_T2}, s12, v{V_T1}
        v_lshl_add_u32 v{V_A+tt}, v{V_T2}, 5, v{V_T0}
        v_add_u32 v{V_A+5+tt}, 0x10000, v{V_A+tt}
        v_add_u32 v{V_A+10+tt}, 0x20000, v{V_A+tt}
        """)
    p(f"""
    s_mul_i32 s13, s10, 6144
    v_add_u32 v{V_B}, s13, v{V_L16}
    v_add_u32 v{V_B+1}, 0x10000, v{V_B}
    v_add_u32 v{V_B+2}, 0x20000, v{V_B}
    v_mul_u32_u24 v{V_OUT}, 2560, v{V_I16}
    v_lshl_add_u32 v{V_OUT}, v{V_G}, 3, v{V_OUT}
    s_lshl_b32 s13, s6, 3
    s_add_u32 s13, s13, s17
    s_lshl_b32 s13, s13, 2
    s_add_u32 s13, s13, s18
    s_lshl_b32 s13, s13, 4
    s_add_u32 s13, s13, s3
    s_mul_i32 s27, s13, 15360
    s_add_u32 s27, s27, {WS_P}
    s_mul_i32 s12, s7, 61440
    s_add_u32 s28, s27, s12
    s_mul_i32 s13, s17, 96
    s_mul_i32 s12, s10, 48
    s_add_u32 s13, s13, s12
    s_mul_i32 s29, s13, 2560
    s_mul_i32 s13, s6, 1280
    s_add_u32 s29, s29, s13
    s_mul_i32 s13, s18, 320
    s_add_u32 s29, s29, s13
    s_mul_i32 s13, s11, 160
    s_add_u32 s29, s29, s13
    """)
    def run(items):
        for x in items:
            if callable(x): x()
            else: p(x)
    def reads2(s):
        c, ks = s // 2, s % 2
        base = (c % NS) * 32768
        fb = FR2 + (s % 2) * 32
        it = []
        for u in range(3):
            if env("K2_NOB", "0") == "1" and s > 1: break
            off = base + (u*2 + ks) * 1024
            it.append(f"ds_read_b128 {vr(fb + 20 + u*4)}, v{V_B + off // 65536} offset:{off % 65536}")
        for tt in range(5):
            if env("K2_NOA", "0") == "1" and s > 1: break
            for hf in range(2):
                off = base + 12288 + ks*10240 + hf*5120
                it.append(f"ds_read_b64_tr_b16 {vr(fb + tt*4 + 2*hf, 2)}, v{V_A + 5*(off // 65536) + tt} offset:{off % 65536}")
        return it
    def mfmas2(s):
        fb = FR2 + (s % 2) * 32
        it = []
        for tt in range(5):
            for u in range(3):
                a = ACC2 + (tt*3+u)*4
                c = "0" if s == 0 else vr(a)
                it.append(f"v_mfma_f32_16x16x32_bf16 {vr(a)}, {vr(fb + tt*4)}, {vr(fb + 20 + u*4)}, {c}")
        return it
    p("s_barrier")
    stamp(p, 1)
    run(reads2(0))
    for s in range(32):
        if s % 2 == 1 and s < 31: p("s_barrier")
        side = reads2(s + 1) if s < 31 else []
        interleave(p, mfmas2(s), side, ratio=1)
    stamp(p, 2)
    p("s_nop 15")
    for q in range(4):
        p(f"s_cmp_eq_u32 s7, {q}")
        p(f"s_cbranch_scc1 L_skipq{q}")
        p(f"s_add_u32 s30, s28, {q*4096}")
        for i in range(4):
            tile = 4*q + i
            if tile < 15:
                p.raw(f"buffer_store_dwordx4 {vr(ACC2 + tile*4)}, v{V_L16}, s[{SWS}:{SWS+3}], s30 offen offset:{i*1024} sc1")
        p(f"L_skipq{q}:")
    for q in range(4):
        p(f"s_cmp_lg_u32 s7, {q}")
        p(f"s_cbranch_scc1 L_nown{q}")
        for i in range(4):
            tile = min(4*q + i, 14)
            for r in range(4):
                p.raw(f"v_mov_b32 v{FR2 + i*4 + r}, v{ACC2 + tile*4 + r}")
        p(f"L_nown{q}:")
    p("s_waitcnt vmcnt(0)")
    stamp(p, 3)
    p("s_barrier")
    p("s_barrier")
    stamp(p, 4)
    p("s_lshl_b32 s31, s7, 12")
    p("s_add_u32 s31, s31, s27")
    for jj in range(3):
        p(f"s_add_u32 s30, s7, {jj+1}\ns_and_b32 s30, s30, 3\ns_mul_i32 s30, s30, 61440\ns_add_u32 s30, s30, s31")
        for i in range(4):
            p(f"buffer_load_dwordx4 {vr(D + (jj*4+i)*4)}, v{V_L16}, s[{SWS}:{SWS+3}], s30 offen offset:{i*1024} sc1")
    for i in range(4):
        if i == 3:
            p("s_cmp_eq_u32 s7, 3")
            p("s_cbranch_scc1 L_fin")
        p(f"""
        s_lshl_b32 s13, s7, 2
        s_add_u32 s13, s13, {i}
        s_mul_i32 s12, s13, 11
        s_lshr_b32 s12, s12, 5
        s_mul_i32 s11, s12, 3
        s_sub_u32 s13, s13, s11
        s_mul_i32 s13, s13, 40960
        s_lshl_b32 s12, s12, 5
        s_add_u32 s13, s13, s12
        s_add_u32 s30, s29, s13
        """)
        b0 = FR2 + i*4
        b1, b2, b3 = [D + (j*4+i)*4 for j in range(3)]
        for r in range(4):
            p(f"v_add_f32 v{b0+r}, v{b0+r}, v{b1+r}")
            p(f"v_add_f32 v{b2+r}, v{b2+r}, v{b3+r}")
            p(f"v_add_f32 v{b0+r}, v{b0+r}, v{b2+r}")
        p(f"v_cvt_pk_bf16_f32 v{b1}, v{b0}, v{b0+1}")
        p(f"v_cvt_pk_bf16_f32 v{b1+1}, v{b0+2}, v{b0+3}")
        p(f"buffer_store_dwordx2 {vr(b1, 2)}, v{V_OUT}, s[{SOUT}:{SOUT+3}], s30 offen")
    p("L_fin:")
    stamp_end(p, 1, 60)
    p("s_endpgm")
    comp = p
    p = Prog()
    p("L_loader_k2:")
    V_WO = 11; V_FL = 16; V_FD = 18
    p("s_movk_i32 s12, 3277")
    for j in range(5):
        p(f"""
        v_add_u32 v{V_T0}, {64*j}, v{V_LANE}
        v_mul_u32_u24 v{V_T1}, s12, v{V_T0}
        v_lshrrev_b32 v{V_T1}, 16, v{V_T1}
        v_mul_u32_u24 v{V_T2}, 20, v{V_T1}
        v_sub_u32 v{V_T0}, v{V_T0}, v{V_T2}
        v_bfe_u32 v{V_T2}, v{V_T1}, 2, 1
        v_lshlrev_b32 v{V_T2}, 1, v{V_T2}
        v_xor_b32 v{V_T0}, v{V_T0}, v{V_T2}
        v_lshlrev_b32 v{V_T0}, 4, v{V_T0}
        v_mul_u32_u24 v{V_T1}, 1280, v{V_T1}
        v_add_u32 v{V_WO+j}, v{V_T0}, v{V_T1}
        """)
    p(f"""
    s_lshr_b32 s10, s3, 1
    s_and_b32 s11, s3, 1
    s_mul_i32 s13, s6, 48
    s_mul_i32 s12, s17, 6
    s_add_u32 s13, s13, s12
    s_mul_i32 s12, s10, 3
    s_add_u32 s13, s13, s12
    s_lshl_b32 s13, s13, 7
    s_lshl_b32 s12, s7, 5
    s_add_u32 s13, s13, s12
    s_add_u32 s13, s13, s11
    s_lshl_b32 s24, s13, 10
    s_mul_i32 s13, s10, 6
    s_add_u32 s13, s13, s11
    s_lshl_b32 s25, s13, 10
    s_lshl_b32 s13, s7, 10
    s_lshl_b32 s12, s3, 4
    s_add_u32 s13, s13, s12
    s_mul_i32 s13, s13, 1280
    s_mul_i32 s12, s18, 320
    s_add_u32 s26, s13, s12
    s_mul_i32 s13, s3, 5120
    s_add_u32 s27, s13, 12288
    s_lshl_b32 s72, s18, 2
    s_lshl_b32 s13, s17, 1
    s_add_u32 s72, s72, s13
    s_and_b32 s72, s72, 15
    """)
    if not ROT2: p("s_mov_b32 s72, 0")
    p(f"""
    s_lshl_b32 s10, s2, 7
    s_add_u32 s10, s10, {WS_F}
    v_mov_b32 v{V_FL}, s10
    s_and_b32 s10, s2, 0xfc
    s_lshl_b32 s10, s10, 7
    s_add_u32 s10, s10, {WS_F}
    v_and_b32 v{V_T0}, 3, v{V_LANE}
    v_lshlrev_b32 v{V_T0}, 7, v{V_T0}
    v_add_u32 v{V_FL+1}, s10, v{V_T0}
    """)
    def dma(c):
        slot = c % NS
        p(f"s_add_u32 s73, s72, {c}\ns_and_b32 s73, s73, 15")
        p("s_mul_i32 s74, s73, 81920\ns_add_u32 s74, s74, s26")
        p("s_lshl_b32 s73, s73, 11\ns_add_u32 s73, s73, s24")
        for i in range(3):
            p(f"s_add_u32 m0, s25, {slot*32768 + i*2048}")
            p(f"s_add_u32 s97, s73, {WS_O + i*131072}")
            p(f"buffer_load_dwordx4 v{V_L16}, s[{SWS}:{SWS+3}], s97 offen lds", tag=f"c{c}")
        for j in range(5):
            p(f"s_add_u32 m0, s27, {slot*32768 + j*1024}")
            p("s_nop 0")
            p(f"buffer_load_dwordx4 v{V_WO+j}, s[{SWO}:{SWO+3}], s74 offen{NT_WO} lds", tag=f"c{c}")
    nxt = 0
    for c in range(DIST2): dma(c); nxt += 1
    for c in range(16):
        p.wait_tag(f"c{c}"); p("s_barrier")
        if nxt <= min(15, c + DIST2): dma(nxt); nxt += 1
    p("s_cmp_lg_u32 s79, 4")
    p("s_cbranch_scc1 L_end_k2")
    p.raw("s_barrier")
    p.raw(f"v_mov_b32 v{V_FD}, 1")
    p.raw(f"buffer_store_dword v{V_FD}, v{V_FL}, s[{SWS}:{SWS+3}], 0 offen sc1")
    p.raw(f"s_mov_b32 s76, {SPIN_MAX}")
    p.raw("L_poll2:")
    p.raw(f"buffer_load_dword v{V_FD}, v{V_FL+1}, s[{SWS}:{SWS+3}], 0 offen sc1")
    p.raw("s_waitcnt vmcnt(0)")
    p.raw(f"v_cmp_ne_u32 vcc, 1, v{V_FD}")
    p.raw("s_nop 4")
    p.raw("s_cmp_eq_u64 vcc, 0")
    p.raw("s_cbranch_scc1 L_done2")
    p.raw(f"s_sleep {SLEEP}")
    p.raw("s_sub_u32 s76, s76, 1")
    p.raw("s_cmp_lg_u32 s76, 0")
    p.raw("s_cbranch_scc1 L_poll2")
    p.raw("L_done2:")
    p.raw("s_barrier")
    p("L_end_k2:")
    p("s_endpgm")
    load = p
    for q in (hd, comp, load): q.finalize()
    hd.ins = hd.ins + comp.ins + load.ins
    return hd

def kd(name, vgpr, sgpr=100):
    return f""".amdhsa_kernel {name}
  .amdhsa_next_free_vgpr {vgpr}
  .amdhsa_next_free_sgpr {sgpr}
  .amdhsa_accum_offset {vgpr}
  .amdhsa_group_segment_fixed_size 0
  .amdhsa_kernarg_size 104
  .amdhsa_user_sgpr_count 2
  .amdhsa_user_sgpr_kernarg_segment_ptr 1
  .amdhsa_system_sgpr_workgroup_id_x 1
.end_amdhsa_kernel
"""
def build(out):
    hdr = open("cdna_kernels/" + NAME + ".s.ref").read().split("; Override launch")[0]
    s = hdr
    s += "; @launch kernel=k1_kernel grid=(256,1,1) block=(512,1,1) lds=163840\n"
    s += "; @launch kernel=k2_kernel grid=(256,1,1) block=(512,1,1) lds=163840\n"
    s += '.amdgcn_target "amdgcn-amd-amdhsa--gfx950"\n.text\n'
    for nm, f in (("k1_kernel", k1), ("k2_kernel", k2)):
        s += f".globl {nm}\n.p2align 8\n.type {nm},@function\n{nm}:\n" + f().text()
    s += '.section .rodata,"a"\n.p2align 6\n'
    s += kd("k1_kernel", 256) + ".p2align 6\n" + kd("k2_kernel", 256)
    open(out, "w").write(s)
if __name__ == "__main__":
    if len(sys.argv) > 2 and sys.argv[2] == "stamp": STAMP = True
    build(sys.argv[1])
```

```python
import sys, math, os, struct
from asmlib import *
NAME = "concat_heads__mha_block_cached__gqa_block_cached__near_ridge"
WS_O = 0
WS_P = 16 << 20
WS_F = 48 << 20
WS_STAMP = 64 << 20
SCALE_LOG2E = (128 ** -0.5) * math.log2(math.e)
def f32bits(x): return struct.unpack('<I', struct.pack('<f', x))[0]
def vr(b, n=4): return f"v[{b}:{b+n-1}]"
def env(k, d): return os.environ.get(k, d)
STAMP = False
ROT = env("ROT", "0") == "1"
ROT2 = env("ROT2", "1") == "1"
NT_W = " nt" if env("NT_W", "0") == "1" else ""
NT_X = " nt" if env("NT_X", "0") == "1" else ""
NT_KV = " nt" if env("NT_KV", "0") == "1" else ""
NT_WO = " nt" if env("NT_WO", "0") == "1" else ""
NT_PF = " nt" if env("NT_PF", "0") == "1" else ""
O_ST = env("O_ST", " sc0 sc1")
DIST = int(env("DIST", "2"))
DIST2 = int(env("DIST2", "2"))
KV_START = int(env("KV_START", "0"))
KV_END = int(env("KV_END", "8"))
PFWO = int(env("PFWO", "10"))
SLEEP = int(env("SLEEP", "4"))
SPIN_MAX = 200000
SX, SK, SV, SWQ, SWS, SWO, SOUT = 40, 44, 48, 52, 56, 60, 64
V_LANE, V_G, V_I16, V_RR, V_CC, V_F, V_T0, V_T1, V_T2, V_L16 = 1, 2, 3, 4, 5, 6, 7, 8, 9, 10

def srd(p, d, lo, hi, size):
    p(f"s_mov_b32 s{d}, s{lo}\ns_mov_b32 s{d+1}, s{hi}\ns_mov_b32 s{d+2}, {size}\ns_mov_b32 s{d+3}, 0x20000")
def srd_sel(p, d, a, b, size):
    p(f"s_cselect_b32 s{d}, s{a}, s{b}\ns_cselect_b32 s{d+1}, s{a+1}, s{b+1}\ns_mov_b32 s{d+2}, {size}\ns_mov_b32 s{d+3}, 0x20000")
def stamp(p, slot):
    if STAMP: p(f"s_memrealtime s[{80+2*slot}:{81+2*slot}]")
def stamp_end(p, kidx, vt):
    if STAMP and env("DBGSTAMP", "0") == "1" and kidx == 1:
        p("s_waitcnt vmcnt(0)")
        stamp(p, 6)
        p("s_waitcnt lgkmcnt(0)")
        p("s_lshl_b32 s96, s2, 2")
        p("s_or_b32 s96, s96, s3")
        p("s_cmp_lg_u32 s96, 308")
        p(f"s_cbranch_scc1 L_nost{kidx}")
        p(f"s_mov_b32 s68, s38\ns_mov_b32 s69, s39\ns_mov_b32 s70, 256\ns_mov_b32 s71, 0x20000")
        p(f"v_mov_b32 v{vt+8}, 0")
        p(f"s_mov_b32 s96, {WS_STAMP + 308*32}")
        p.raw(f"buffer_load_dwordx4 v[{vt+12}:{vt+15}], v{vt+8}, s[{SWS}:{SWS+3}], s96 offen")
        p.raw(f"buffer_load_dwordx4 v[{vt+16}:{vt+19}], v{vt+8}, s[{SWS}:{SWS+3}], s96 offen offset:16")
        for i in range(8):
            p.raw(f"v_mov_b32 v{vt+i}, s{80+2*i}")
        p.raw("s_waitcnt vmcnt(0)")
        p.raw(f"buffer_store_dwordx4 v[{vt+12}:{vt+15}], v{vt+8}, s[68:71], 0 offen")
        p.raw(f"buffer_store_dwordx4 v[{vt+16}:{vt+19}], v{vt+8}, s[68:71], 0 offen offset:16")
        p.raw(f"buffer_store_dwordx4 v[{vt}:{vt+3}], v{vt+8}, s[68:71], 0 offen offset:32")
        p.raw(f"buffer_store_dwordx4 v[{vt+4}:{vt+7}], v{vt+8}, s[68:71], 0 offen offset:48")
        p(f"L_nost{kidx}:")
        return
    if STAMP:
        p("s_waitcnt vmcnt(0)")
        stamp(p, 6)
        p("s_waitcnt lgkmcnt(0)")
        p(f"s_lshl_b32 s96, s2, 2\ns_add_u32 s96, s96, s3\ns_lshl_b32 s96, s96, 5\ns_add_u32 s96, s96, {WS_STAMP + kidx*65536}")
        for i in range(8): p(f"v_mov_b32 v{vt+i}, s{80+2*i}")
        p(f"""
        v_mov_b32 v{vt+8}, 0
        buffer_store_dwordx4 v[{vt}:{vt+3}], v{vt+8}, s[{SWS}:{SWS+3}], s96 offen
        buffer_store_dwordx4 v[{vt+4}:{vt+7}], v{vt+8}, s[{SWS}:{SWS+3}], s96 offen offset:16
        """)

def head(tag):
    p = Prog()
    p("s_cmp_ge_u32 s2, 256")
    p(f"s_cbranch_scc1 L_end_{tag}")
    if STAMP:
        for i in range(80, 96): p(f"s_mov_b32 s{i}, 0")
    stamp(p, 0)
    p("""
    s_load_dwordx16 s[16:31], s[0:1], 0
    s_load_dwordx8 s[32:39], s[0:1], 64
    s_load_dwordx2 s[14:15], s[0:1], 96
    """)
    p(f"""
    v_and_b32 v{V_LANE}, 63, v0
    v_lshrrev_b32 v{V_T0}, 6, v0
    v_lshrrev_b32 v{V_G}, 4, v{V_LANE}
    v_readfirstlane_b32 s79, v{V_T0}
    v_and_b32 v{V_I16}, 15, v0
    v_bfe_u32 v{V_RR}, v0, 2, 2
    v_and_b32 v{V_CC}, 3, v0
    v_lshlrev_b32 v{V_L16}, 4, v{V_LANE}
    s_and_b32 s3, s79, 3
    s_and_b32 s4, s2, 7
    s_lshr_b32 s5, s2, 3
    s_lshr_b32 s6, s4, 2
    s_and_b32 s7, s4, 3
    s_lshr_b32 s8, s5, 2
    s_and_b32 s9, s5, 3
    """)
    p("s_waitcnt lgkmcnt(0)")
    p("s_cmp_eq_u32 s6, 0")
    if tag == "k1":
        srd_sel(p, SX, 16, 26, 983040)
        srd_sel(p, SK, 18, 28, 6291456)
        srd_sel(p, SV, 20, 30, 6291456)
        srd_sel(p, SWQ, 22, 32, 5242880)
    srd_sel(p, SWO, 24, 34, 5242880)
    srd(p, SWS, 14, 15, 0x10000000)
    if tag == "k2": srd(p, SOUT, 36, 37, 16*48*1280*2)
    p("""
    s_lshl_b32 s16, s7, 3
    s_add_u32 s16, s16, s8
    s_lshl_b32 s17, s9, 1
    s_lshr_b32 s10, s8, 2
    s_add_u32 s17, s17, s10
    s_and_b32 s18, s8, 3
    """)
    p("s_cmp_ge_u32 s79, 4")
    p(f"s_cbranch_scc1 L_loader_{tag}")
    return p

def k1():
    NSL = 4
    LX = 65536
    hd = head("k1")
    p = Prog()
    V_XR = 11; V_TR = 13; V_TV = 21; V_KR = 29
    T3 = 37
    FR = 40; ACC = 136; TMP = 232
    p(f"""
    s_mul_i32 s10, s3, 24576
    s_add_u32 s77, s10, {LX}
    s_lshl_b32 s22, s9, 2
    s_add_u32 s22, s22, s3
    v_and_b32 v{V_T0}, 1, v{V_G}
    v_lshlrev_b32 v{V_T0}, 2, v{V_T0}
    v_or_b32 v{V_F}, v{V_RR}, v{V_T0}
    v_lshrrev_b32 v{V_T0}, 1, v{V_I16}
    v_xor_b32 v{V_T0}, v{V_T0}, v{V_G}
    v_lshlrev_b32 v{V_T1}, 7, v{V_I16}
    v_add_u32 v{V_T1}, s77, v{V_T1}
    v_lshl_add_u32 v{V_XR}, v{V_T0}, 4, v{V_T1}
    v_xor_b32 v{V_T0}, 4, v{V_T0}
    v_lshl_add_u32 v{V_XR+1}, v{V_T0}, 4, v{V_T1}
    v_lshl_add_u32 v{V_T0}, v{V_G}, 3, v{V_RR}
    v_lshlrev_b32 v{V_T0}, 8, v{V_T0}
    v_lshl_add_u32 v{V_T0}, v{V_CC}, 3, v{V_T0}
    v_lshl_add_u32 v{V_T1}, v{V_G}, 2, v{V_RR}
    v_lshlrev_b32 v{V_T1}, 8, v{V_T1}
    v_lshl_add_u32 v{V_T1}, v{V_CC}, 3, v{V_T1}
    v_add_u32 v{V_T1}, s77, v{V_T1}
    """)
    for t in range(8):
        p(f"""
        v_xor_b32 v{TMP}, {t}, v{V_F}
        v_lshl_add_u32 v{V_TR+t}, v{TMP}, 5, v{V_T0}
        v_lshl_add_u32 v{V_TV+t}, v{TMP}, 5, v{V_T1}
        """)
    p(f"""
    v_lshrrev_b32 v{V_T0}, 1, v{V_G}
    v_xor_b32 v{V_T0}, v{V_T0}, v{V_I16}
    v_and_b32 v{V_T1}, 1, v{V_G}
    v_lshlrev_b32 v{V_T1}, 3, v{V_T1}
    v_lshl_add_u32 v{V_T1}, v{V_I16}, 8, v{V_T1}
    v_add_u32 v{V_T1}, s77, v{V_T1}
    """)
    for j in range(8):
        p(f"""
        v_xor_b32 v{TMP}, {2*j}, v{V_T0}
        v_lshl_add_u32 v{V_KR+j}, v{TMP}, 4, v{V_T1}
        """)
    p(f"""
    s_mul_i32 s10, s6, 48
    s_mul_i32 s11, s22, 3
    s_add_u32 s10, s10, s11
    s_lshl_b32 s10, s10, 7
    s_lshl_b32 s11, s16, 2
    s_add_u32 s10, s10, s11
    s_lshl_b32 s24, s10, 10
    s_add_u32 s25, s24, 131072
    s_add_u32 s26, s24, 262144
    s_mov_b32 s98, {f32bits(SCALE_LOG2E)}
    """)
    def run(items):
        for x in items:
            if callable(x): x()
            else: p(x)
    def reads(s):
        c, ks = s // 2, s % 2
        it = []
        fb = FR + (s % 2) * 44
        for u in range(3):
            it.append(f"ds_read_b128 {vr(fb + 32 + u*4)}, v{V_XR + ks} offset:{(c % NSL)*6144 + u*2048}")
        off0 = (c % NSL) * 16384 + ks * 8192
        for t in range(8):
            for hf in range(2):
                it.append(f"ds_read_b64_tr_b16 {vr(fb + t*4 + 2*hf, 2)}, v{V_TR+t} offset:{off0 + hf*1024}")
        return it
    def mfmas(s, order_u=False):
        it = []
        fb = FR + (s % 2) * 44
        idx = [(t, u) for u in range(3) for t in range(8)] if order_u else [(t, u) for t in range(8) for u in range(3)]
        for t, u in idx:
            a = ACC + (t*3+u)*4
            c = "0" if s == 0 else vr(a)
            it.append(f"v_mfma_f32_16x16x32_bf16 {vr(a)}, {vr(fb + t*4)}, {vr(fb + 32 + u*4)}, {c}")
        return it
    def KF(i): return 40 + 4*i if i < 11 else 128
    def QF(i): return 84 + 4*i if i < 11 else 132
    kreads = [f"ds_read_b64 {vr(KF(kt*4+T) + 2*hf, 2)}, v{V_KR + 2*T + hf} offset:{12288 + kt*4096}" for kt in range(3) for T in range(4) for hf in range(2)]
    p("s_barrier")
    stamp(p, 1)
    run(reads(0))
    for s in range(20):
        if s % 2 == 1:
            p.wait_lg(0)
            p("s_barrier")
        side = reads(s + 1) if s < 19 else kreads
        interleave(p, mfmas(s, order_u=(s == 19)), side, ratio=1)
    stamp(p, 2)
    ST = ACC
    VF = ACC + 40
    PFR = TMP
    AO = 40
    def cvtq(u):
        it = []
        for T in range(4):
            for k in range(4):
                a = ACC + ((2*T + k//2)*3 + u)*4 + 2*(k%2)
                it.append(f"v_cvt_pk_bf16_f32 v{QF(T*3+u) + k}, v{a}, v{a+1}")
        return it
    def st(u):
        it = []
        for T in range(4):
            for kt in range(3):
                d = ST + (kt*3+u)*4
                c = "0" if T == 0 else vr(d)
                it.append(f"v_mfma_f32_16x16x32_bf16 {vr(d)}, {vr(KF(kt*4+T))}, {vr(QF(T*3+u))}, {c}")
        return it
    def sm(u):
        it = []
        vals = [ST + (kt*3+u)*4 + r for kt in range(3) for r in range(4)]
        m, t2, sm_ = T3, T3+1, T3+2
        it.append(f"v_max3_f32 v{m}, v{vals[0]}, v{vals[1]}, v{vals[2]}")
        it.append(f"v_max3_f32 v{t2}, v{vals[3]}, v{vals[4]}, v{vals[5]}")
        it.append(f"v_max3_f32 v{m}, v{m}, v{vals[6]}, v{vals[7]}")
        it.append(f"v_max3_f32 v{t2}, v{t2}, v{vals[8]}, v{vals[9]}")
        it.append(f"v_max3_f32 v{m}, v{m}, v{vals[10]}, v{vals[11]}")
        it.append(f"v_max_f32 v{m}, v{m}, v{t2}")
        it += [f"v_mov_b32 v{t2}, v{m}", f"v_permlane16_swap_b32 v{m}, v{t2}", f"v_max_f32 v{m}, v{m}, v{t2}",
               f"v_mov_b32 v{t2}, v{m}", f"v_permlane32_swap_b32 v{m}, v{t2}", f"v_max_f32 v{m}, v{m}, v{t2}",
               f"v_mul_f32 v{m}, s98, v{m}"]
        for v in vals: it.append(f"v_fma_f32 v{v}, v{v}, s98, -v{m}")
        for v in vals: it.append(f"v_exp_f32 v{v}, v{v}")
        it.append(f"v_add_f32 v{sm_}, v{vals[0]}, v{vals[1]}")
        it.append(f"v_add_f32 v{t2}, v{vals[2]}, v{vals[3]}")
        for i in range(4, 12, 2):
            it.append(f"v_add_f32 v{sm_}, v{sm_}, v{vals[i]}")
            it.append(f"v_add_f32 v{t2}, v{t2}, v{vals[i+1]}")
        it.append(f"v_add_f32 v{sm_}, v{sm_}, v{t2}")
        it += [f"v_mov_b32 v{t2}, v{sm_}", f"v_permlane16_swap_b32 v{sm_}, v{t2}", f"v_add_f32 v{sm_}, v{sm_}, v{t2}",
               f"v_mov_b32 v{t2}, v{sm_}", f"v_permlane32_swap_b32 v{sm_}, v{t2}", f"v_add_f32 v{sm_}, v{sm_}, v{t2}",
               f"v_rcp_f32 v{sm_}, v{sm_}"]
        for v in vals: it.append(f"v_mul_f32 v{v}, v{v}, v{sm_}")
        for i in range(6): it.append(f"v_cvt_pk_bf16_f32 v{PFR + u*8 + i}, v{vals[2*i]}, v{vals[2*i+1]}")
        return it
    def pv(u):
        it = []
        for t in range(8):
            d = AO + (t*3+u)*4
            it.append(f"v_mfma_f32_16x16x32_bf16 {vr(d)}, {vr(VF + t*6)}, {vr(PFR + u*8)}, 0")
        for t in range(8):
            d = AO + (t*3+u)*4
            it.append(f"v_mfma_f32_16x16x16_bf16 {vr(d)}, {vr(VF + t*6 + 4, 2)}, {vr(PFR + u*8 + 4, 2)}, {vr(d)}")
        return it
    def cvto(u):
        it = []
        for T in range(4):
            r0 = AO + ((2*T)*3 + u)*4
            r1 = AO + ((2*T+1)*3 + u)*4
            it += [f"v_cvt_pk_bf16_f32 v{r0}, v{r0}, v{r0+1}", f"v_cvt_pk_bf16_f32 v{r0+1}, v{r0+2}, v{r0+3}",
                   f"v_cvt_pk_bf16_f32 v{r0+2}, v{r1}, v{r1+1}", f"v_cvt_pk_bf16_f32 v{r0+3}, v{r1+2}, v{r1+3}",
                   f"buffer_store_dwordx4 {vr(r0)}, v{V_L16}, s[{SWS}:{SWS+3}], s{24+u} offen offset:{T*1024}{O_ST}"]
        return it
    vreads = [f"ds_read_b64_tr_b16 {vr(VF + t*6 + 2*kp, 2)}, v{V_TV+t} offset:{kp*4096}" for t in range(8) for kp in range(3)]
    run(cvtq(0))
    interleave(p, st(0), cvtq(1), ratio=2)
    interleave(p, st(1), cvtq(2), ratio=2)
    p("s_barrier")
    s0 = sm(0)
    interleave(p, st(2), vreads + s0[:12], ratio=3)
    run(s0[12:])
    interleave(p, pv(0), sm(1), ratio=5)
    interleave(p, pv(1), sm(2) , ratio=5)
    run(cvto(0))
    interleave(p, pv(2), cvto(1), ratio=2)
    run(cvto(2))
    stamp_end(p, 0, 136)
    p("s_endpgm")
    comp = p

    p = Prog()
    p("L_loader_k1:")
    p("s_cmp_ge_u32 s79, 6")
    p("s_cbranch_scc1 L_kv")
    V_DA, V_DB, V_XD, V_PF = 11, 12, 13, 16
    p(f"""
    s_and_b32 s23, s79, 1
    v_lshlrev_b32 v{V_T0}, 1, v{V_G}
    v_xor_b32 v{V_T0}, v{V_T0}, v{V_I16}
    v_lshlrev_b32 v{V_T0}, 4, v{V_T0}
    v_lshl_add_u32 v{V_DA}, v{V_G}, 13, v{V_T0}
    v_xor_b32 v{V_DB}, 0x80, v{V_DA}
    v_lshrrev_b32 v{V_T0}, 3, v{V_LANE}
    v_mul_u32_u24 v{V_T0}, 1280, v{V_T0}
    v_and_b32 v{V_T1}, 7, v{V_LANE}
    v_xor_b32 v{V_T1}, v{V_T1}, v{V_G}
    v_lshl_add_u32 v{V_XD}, v{V_T1}, 4, v{V_T0}
    v_xor_b32 v{V_T1}, 4, v{V_T1}
    v_lshl_add_u32 v{V_XD+1}, v{V_T1}, 4, v{V_T0}
    s_lshl_b32 s24, s16, 8
    s_lshl_b32 s10, s23, 18
    s_add_u32 s24, s24, s10
    s_lshl_b32 s25, s23, 13
    s_lshl_b32 s22, s9, 2
    s_lshl_b32 s10, s23, 1
    s_add_u32 s22, s22, s10
    s_mul_i32 s26, s22, 61440
    s_mul_i32 s77, s23, 49152
    s_add_u32 s77, s77, {LX}
    s_mul_i32 s10, s9, 5
    s_lshr_b32 s10, s10, 1
    s_mul_i32 s11, s8, 5
    s_lshr_b32 s11, s11, 2
    s_add_u32 s72, s10, s11
    s_cmp_ge_u32 s72, 10
    s_cselect_b32 s10, 10, 0
    s_sub_u32 s72, s72, s10
    """)
    if not ROT: p("s_mov_b32 s72, 0")
    def chunk_loads(c):
        if c > 0:
            p("s_add_u32 s72, s72, 1\ns_cmp_ge_u32 s72, 10\ns_cselect_b32 s10, 10, 0\ns_sub_u32 s72, s72, s10")
        p("s_lshl_b32 s73, s72, 19\ns_add_u32 s73, s73, s24\ns_lshl_b32 s74, s72, 7\ns_add_u32 s74, s74, s26")
        for i in range(8):
            p(f"s_add_u32 m0, s25, {(c % NSL)*16384 + i*1024}")
            p(f"s_add_u32 s97, s73, {(4*i) * 8192}")
            p(f"buffer_load_dwordx4 v{V_DA if (i % 4) < 2 else V_DB}, s[{SWQ}:{SWQ+3}], s97 offen{NT_W} lds", tag=f"c{c}")
        for ww in range(2):
            for j in range(6):
                p(f"s_add_u32 m0, s77, {ww*24576 + (c % NSL)*6144 + j*1024}")
                p(f"s_add_u32 s97, s74, {ww*61440 + j * 10240}")
                p(f"buffer_load_dwordx4 v{V_XD + j % 2}, s[{SX}:{SX+3}], s97 offen{NT_X} lds", tag=f"c{c}")
    def pf_wo():
        p(f"""
        s_lshl_b32 s10, s5, 1
        s_add_u32 s10, s10, s23
        s_lshl_b32 s11, s7, 6
        s_add_u32 s10, s10, s11
        s_mul_i32 s75, s10, 20480
        v_lshlrev_b32 v{V_PF}, 7, v{V_LANE}
        v_add_u32 v{V_PF+1}, 8192, v{V_PF}
        v_add_u32 v{V_PF+2}, 16384, v{V_PF}
        v_cmp_lt_u32 vcc, 31, v{V_LANE}
        v_cndmask_b32 v{V_PF+2}, v{V_PF+2}, -1, vcc
        buffer_load_dword v{V_PF+4}, v{V_PF}, s[{SWO}:{SWO+3}], s75 offen{NT_PF}
        buffer_load_dword v{V_PF+5}, v{V_PF+1}, s[{SWO}:{SWO+3}], s75 offen{NT_PF}
        buffer_load_dword v{V_PF+6}, v{V_PF+2}, s[{SWO}:{SWO+3}], s75 offen{NT_PF}
        """)
    p(f"""
    s_lshl_b32 s10, s2, 7
    s_add_u32 s10, s10, {WS_F}
    v_mov_b32 v{V_PF}, 0
    buffer_store_dword v{V_PF}, v{V_PF}, s[{SWS}:{SWS+3}], s10 offen
    """)
    for c in range(DIST): chunk_loads(c)
    for c in range(10):
        p.wait_tag(f"c{c}"); p("s_barrier")
        if c + DIST < 10: chunk_loads(c + DIST)
        if c == PFWO: pf_wo()
    p("s_barrier")
    if PFWO == 10: pf_wo()
    p("s_barrier")
    if PFWO == 11: pf_wo()
    p("s_endpgm")
    load1 = p
    p = Prog()
    p("L_kv:")
    V_VA, V_VB, V_WR, V_KD = 11, 12, 13, 14
    RS = 32
    p(f"""
    s_and_b32 s23, s79, 1
    v_lshlrev_b32 v{V_T0}, 1, v{V_G}
    v_xor_b32 v{V_T0}, v{V_T0}, v{V_I16}
    v_lshlrev_b32 v{V_T0}, 4, v{V_T0}
    v_lshl_add_u32 v{V_VA}, v{V_G}, 8, v{V_T0}
    v_xor_b32 v{V_VB}, 0x80, v{V_VA}
    s_mul_i32 s77, s23, 49152
    s_add_u32 s77, s77, {LX}
    v_add_u32 v{V_WR}, s77, v{V_L16}
    v_xor_b32 v{V_T0}, v{V_G}, v{V_I16}
    v_lshlrev_b32 v{V_T0}, 4, v{V_T0}
    v_lshl_add_u32 v{V_KD}, v{V_G}, 8, v{V_T0}
    v_xor_b32 v{V_KD+1}, 0x40, v{V_KD}
    v_xor_b32 v{V_KD+2}, 0x80, v{V_KD}
    v_xor_b32 v{V_KD+3}, 0xc0, v{V_KD}
    s_lshl_b32 s22, s9, 2
    s_lshl_b32 s10, s23, 1
    s_add_u32 s22, s22, s10
    s_lshl_b32 s10, s22, 5
    s_add_u32 s10, s10, s16
    s_mul_i32 s24, s10, 12288
    s_add_u32 s25, s24, 4096
    s_add_u32 s26, s24, 8192
    s_add_u32 s27, s24, 393216
    s_add_u32 s28, s27, 4096
    s_add_u32 s29, s27, 8192
    """)
    kv = []
    for ww in range(2):
        kv += [f"buffer_load_dwordx4 {vr(RS + ww*96 + i*4)}, v{V_KD + i % 4}, s[{SK}:{SK+3}], s{24 + 3*ww + i//4} offen offset:{(i%4)*1024}{NT_KV}" for i in range(12)]
    for ww in range(2):
        kv += [f"buffer_load_dwordx4 {vr(RS + ww*96 + 48 + i*4)}, v{V_VA if i % 2 == 0 else V_VB}, s[{SV}:{SV+3}], s{24 + 3*ww + i//4} offen offset:{(i%4)*1024}{NT_KV}" for i in range(12)]
    nb = KV_END - KV_START
    per = (len(kv) + nb - 1) // nb
    for c in range(-1, 10):
        if c >= 0: p("s_barrier")
        if c >= KV_START:
            for x in kv[:per]: p(x)
            kv = kv[per:]
    for x in kv: p(x)
    for ww in range(2):
        for i in range(12):
            p(f"ds_write_b128 v{V_WR}, {vr(RS + ww*96 + i*4)} offset:{ww*24576 + 12288 + i*1024}")
    p.wait_lg(0)
    p("s_barrier")
    for ww in range(2):
        for i in range(12):
            p(f"ds_write_b128 v{V_WR}, {vr(RS + ww*96 + 48 + i*4)} offset:{ww*24576 + i*1024}")
    p.wait_lg(0)
    p("s_barrier")
    p("L_end_k1:")
    p("s_endpgm")
    load2 = p
    for q in (hd, comp, load1, load2): q.finalize()
    hd.ins = hd.ins + comp.ins + load1.ins + load2.ins
    return hd

def k2():
    NS = 5
    hd = head("k2")
    p = Prog()
    V_A = 11; V_B = 26; V_OUT = 29
    FR2 = 32; ACC2 = 96; D = 156
    p("""
    s_lshr_b32 s10, s3, 1
    s_and_b32 s11, s3, 1
    """)
    p(f"""
    v_lshl_add_u32 v{V_T0}, v{V_G}, 2, v{V_RR}
    v_mul_u32_u24 v{V_T0}, 320, v{V_T0}
    v_lshl_add_u32 v{V_T0}, v{V_CC}, 3, v{V_T0}
    v_and_b32 v{V_T1}, 1, v{V_G}
    s_mul_i32 s13, s11, 5
    """)
    for tt in range(5):
        p(f"""
        s_add_u32 s12, s13, {tt}
        v_xor_b32 v{V_T2}, s12, v{V_T1}
        v_lshl_add_u32 v{V_A+tt}, v{V_T2}, 5, v{V_T0}
        v_add_u32 v{V_A+5+tt}, 0x10000, v{V_A+tt}
        v_add_u32 v{V_A+10+tt}, 0x20000, v{V_A+tt}
        """)
    p(f"""
    s_mul_i32 s13, s10, 6144
    v_add_u32 v{V_B}, s13, v{V_L16}
    v_add_u32 v{V_B+1}, 0x10000, v{V_B}
    v_add_u32 v{V_B+2}, 0x20000, v{V_B}
    v_mul_u32_u24 v{V_OUT}, 2560, v{V_I16}
    v_lshl_add_u32 v{V_OUT}, v{V_G}, 3, v{V_OUT}
    s_lshl_b32 s13, s6, 3
    s_add_u32 s13, s13, s17
    s_lshl_b32 s13, s13, 2
    s_add_u32 s13, s13, s18
    s_lshl_b32 s13, s13, 4
    s_add_u32 s13, s13, s3
    s_mul_i32 s27, s13, 15360
    s_add_u32 s27, s27, {WS_P}
    s_mul_i32 s12, s7, 61440
    s_add_u32 s28, s27, s12
    s_mul_i32 s13, s17, 96
    s_mul_i32 s12, s10, 48
    s_add_u32 s13, s13, s12
    s_mul_i32 s29, s13, 2560
    s_mul_i32 s13, s6, 1280
    s_add_u32 s29, s29, s13
    s_mul_i32 s13, s18, 320
    s_add_u32 s29, s29, s13
    s_mul_i32 s13, s11, 160
    s_add_u32 s29, s29, s13
    """)
    def run(items):
        for x in items:
            if callable(x): x()
            else: p(x)
    def reads2(s):
        c, ks = s // 2, s % 2
        base = (c % NS) * 32768
        fb = FR2 + (s % 2) * 32
        it = []
        for u in range(3):
            if env("K2_NOB", "0") == "1" and s > 1: break
            off = base + (u*2 + ks) * 1024
            it.append(f"ds_read_b128 {vr(fb + 20 + u*4)}, v{V_B + off // 65536} offset:{off % 65536}")
        for tt in range(5):
            if env("K2_NOA", "0") == "1" and s > 1: break
            for hf in range(2):
                off = base + 12288 + ks*10240 + hf*5120
                it.append(f"ds_read_b64_tr_b16 {vr(fb + tt*4 + 2*hf, 2)}, v{V_A + 5*(off // 65536) + tt} offset:{off % 65536}")
        return it
    def mfmas2(s):
        fb = FR2 + (s % 2) * 32
        it = []
        for tt in range(5):
            for u in range(3):
                a = ACC2 + (tt*3+u)*4
                c = "0" if s == 0 else vr(a)
                it.append(f"v_mfma_f32_16x16x32_bf16 {vr(a)}, {vr(fb + tt*4)}, {vr(fb + 20 + u*4)}, {c}")
        return it
    p("s_barrier")
    stamp(p, 1)
    run(reads2(0))
    for s in range(32):
        if s % 2 == 1 and s < 31: p("s_barrier")
        side = reads2(s + 1) if s < 31 else []
        interleave(p, mfmas2(s), side, ratio=1)
    stamp(p, 2)
    p("s_nop 15")
    for q in range(4):
        p(f"s_cmp_eq_u32 s7, {q}")
        p(f"s_cbranch_scc1 L_skipq{q}")
        p(f"s_add_u32 s30, s28, {q*4096}")
        for i in range(4):
            tile = 4*q + i
            if tile < 15:
                p.raw(f"buffer_store_dwordx4 {vr(ACC2 + tile*4)}, v{V_L16}, s[{SWS}:{SWS+3}], s30 offen offset:{i*1024} sc1")
        p(f"L_skipq{q}:")
    for q in range(4):
        p(f"s_cmp_lg_u32 s7, {q}")
        p(f"s_cbranch_scc1 L_nown{q}")
        for i in range(4):
            tile = min(4*q + i, 14)
            for r in range(4):
                p.raw(f"v_mov_b32 v{FR2 + i*4 + r}, v{ACC2 + tile*4 + r}")
        p(f"L_nown{q}:")
    p("s_waitcnt vmcnt(0)")
    stamp(p, 3)
    p("s_barrier")
    p("s_barrier")
    stamp(p, 4)
    p("s_lshl_b32 s31, s7, 12")
    p("s_add_u32 s31, s31, s27")
    for jj in range(3):
        p(f"s_add_u32 s30, s7, {jj+1}\ns_and_b32 s30, s30, 3\ns_mul_i32 s30, s30, 61440\ns_add_u32 s30, s30, s31")
        for i in range(4):
            p(f"buffer_load_dwordx4 {vr(D + (jj*4+i)*4)}, v{V_L16}, s[{SWS}:{SWS+3}], s30 offen offset:{i*1024} sc1")
    for i in range(4):
        if i == 3:
            p("s_cmp_eq_u32 s7, 3")
            p("s_cbranch_scc1 L_fin")
        p(f"""
        s_lshl_b32 s13, s7, 2
        s_add_u32 s13, s13, {i}
        s_mul_i32 s12, s13, 11
        s_lshr_b32 s12, s12, 5
        s_mul_i32 s11, s12, 3
        s_sub_u32 s13, s13, s11
        s_mul_i32 s13, s13, 40960
        s_lshl_b32 s12, s12, 5
        s_add_u32 s13, s13, s12
        s_add_u32 s30, s29, s13
        """)
        b0 = FR2 + i*4
        b1, b2, b3 = [D + (j*4+i)*4 for j in range(3)]
        for r in range(4):
            p(f"v_add_f32 v{b0+r}, v{b0+r}, v{b1+r}")
            p(f"v_add_f32 v{b2+r}, v{b2+r}, v{b3+r}")
            p(f"v_add_f32 v{b0+r}, v{b0+r}, v{b2+r}")
        p(f"v_cvt_pk_bf16_f32 v{b1}, v{b0}, v{b0+1}")
        p(f"v_cvt_pk_bf16_f32 v{b1+1}, v{b0+2}, v{b0+3}")
        p(f"buffer_store_dwordx2 {vr(b1, 2)}, v{V_OUT}, s[{SOUT}:{SOUT+3}], s30 offen")
    p("L_fin:")
    stamp_end(p, 1, 60)
    p("s_endpgm")
    comp = p
    p = Prog()
    p("L_loader_k2:")
    V_WO = 11; V_FL = 16; V_FD = 18
    p("s_movk_i32 s12, 3277")
    for j in range(5):
        p(f"""
        v_add_u32 v{V_T0}, {64*j}, v{V_LANE}
        v_mul_u32_u24 v{V_T1}, s12, v{V_T0}
        v_lshrrev_b32 v{V_T1}, 16, v{V_T1}
        v_mul_u32_u24 v{V_T2}, 20, v{V_T1}
        v_sub_u32 v{V_T0}, v{V_T0}, v{V_T2}
        v_bfe_u32 v{V_T2}, v{V_T1}, 2, 1
        v_lshlrev_b32 v{V_T2}, 1, v{V_T2}
        v_xor_b32 v{V_T0}, v{V_T0}, v{V_T2}
        v_lshlrev_b32 v{V_T0}, 4, v{V_T0}
        v_mul_u32_u24 v{V_T1}, 1280, v{V_T1}
        v_add_u32 v{V_WO+j}, v{V_T0}, v{V_T1}
        """)
    p(f"""
    s_lshr_b32 s10, s3, 1
    s_and_b32 s11, s3, 1
    s_mul_i32 s13, s6, 48
    s_mul_i32 s12, s17, 6
    s_add_u32 s13, s13, s12
    s_mul_i32 s12, s10, 3
    s_add_u32 s13, s13, s12
    s_lshl_b32 s13, s13, 7
    s_lshl_b32 s12, s7, 5
    s_add_u32 s13, s13, s12
    s_add_u32 s13, s13, s11
    s_lshl_b32 s24, s13, 10
    s_mul_i32 s13, s10, 6
    s_add_u32 s13, s13, s11
    s_lshl_b32 s25, s13, 10
    s_lshl_b32 s13, s7, 10
    s_lshl_b32 s12, s3, 4
    s_add_u32 s13, s13, s12
    s_mul_i32 s13, s13, 1280
    s_mul_i32 s12, s18, 320
    s_add_u32 s26, s13, s12
    s_mul_i32 s13, s3, 5120
    s_add_u32 s27, s13, 12288
    s_lshl_b32 s72, s18, 2
    s_lshl_b32 s13, s17, 1
    s_add_u32 s72, s72, s13
    s_and_b32 s72, s72, 15
    """)
    if not ROT2: p("s_mov_b32 s72, 0")
    p(f"""
    s_lshl_b32 s10, s2, 7
    s_add_u32 s10, s10, {WS_F}
    v_mov_b32 v{V_FL}, s10
    s_and_b32 s10, s2, 0xfc
    s_lshl_b32 s10, s10, 7
    s_add_u32 s10, s10, {WS_F}
    v_and_b32 v{V_T0}, 3, v{V_LANE}
    v_lshlrev_b32 v{V_T0}, 7, v{V_T0}
    v_add_u32 v{V_FL+1}, s10, v{V_T0}
    """)
    def dma(c):
        slot = c % NS
        p(f"s_add_u32 s73, s72, {c}\ns_and_b32 s73, s73, 15")
        p("s_mul_i32 s74, s73, 81920\ns_add_u32 s74, s74, s26")
        p("s_lshl_b32 s73, s73, 11\ns_add_u32 s73, s73, s24")
        for i in range(3):
            p(f"s_add_u32 m0, s25, {slot*32768 + i*2048}")
            p(f"s_add_u32 s97, s73, {WS_O + i*131072}")
            p(f"buffer_load_dwordx4 v{V_L16}, s[{SWS}:{SWS+3}], s97 offen lds", tag=f"c{c}")
        for j in range(5):
            p(f"s_add_u32 m0, s27, {slot*32768 + j*1024}")
            p("s_nop 0")
            p(f"buffer_load_dwordx4 v{V_WO+j}, s[{SWO}:{SWO+3}], s74 offen{NT_WO} lds", tag=f"c{c}")
    nxt = 0
    for c in range(DIST2): dma(c); nxt += 1
    for c in range(16):
        p.wait_tag(f"c{c}"); p("s_barrier")
        if nxt <= min(15, c + DIST2): dma(nxt); nxt += 1
    p("s_cmp_lg_u32 s79, 4")
    p("s_cbranch_scc1 L_end_k2")
    p.raw("s_barrier")
    p.raw(f"v_mov_b32 v{V_FD}, 1")
    p.raw(f"buffer_store_dword v{V_FD}, v{V_FL}, s[{SWS}:{SWS+3}], 0 offen sc1")
    p.raw(f"s_mov_b32 s76, {SPIN_MAX}")
    p.raw("L_poll2:")
    p.raw(f"buffer_load_dword v{V_FD}, v{V_FL+1}, s[{SWS}:{SWS+3}], 0 offen sc1")
    p.raw("s_waitcnt vmcnt(0)")
    p.raw(f"v_cmp_ne_u32 vcc, 1, v{V_FD}")
    p.raw("s_nop 4")
    p.raw("s_cmp_eq_u64 vcc, 0")
    p.raw("s_cbranch_scc1 L_done2")
    p.raw(f"s_sleep {SLEEP}")
    p.raw("s_sub_u32 s76, s76, 1")
    p.raw("s_cmp_lg_u32 s76, 0")
    p.raw("s_cbranch_scc1 L_poll2")
    p.raw("L_done2:")
    p.raw("s_barrier")
    p("L_end_k2:")
    p("s_endpgm")
    load = p
    for q in (hd, comp, load): q.finalize()
    hd.ins = hd.ins + comp.ins + load.ins
    return hd

def kd(name, vgpr, sgpr=100):
    return f""".amdhsa_kernel {name}
  .amdhsa_next_free_vgpr {vgpr}
  .amdhsa_next_free_sgpr {sgpr}
  .amdhsa_accum_offset {vgpr}
  .amdhsa_group_segment_fixed_size 0
  .amdhsa_kernarg_size 104
  .amdhsa_user_sgpr_count 2
  .amdhsa_user_sgpr_kernarg_segment_ptr 1
  .amdhsa_system_sgpr_workgroup_id_x 1
.end_amdhsa_kernel
"""
def build(out):
    hdr = open("cdna_kernels/" + NAME + ".s.ref").read().split("; Override launch")[0]
    s = hdr
    s += "; @launch kernel=k1_kernel grid=(256,1,1) block=(512,1,1) lds=163840\n"
    s += "; @launch kernel=k2_kernel grid=(256,1,1) block=(512,1,1) lds=163840\n"
    s += '.amdgcn_target "amdgcn-amd-amdhsa--gfx950"\n.text\n'
    for nm, f in (("k1_kernel", k1), ("k2_kernel", k2)):
        s += f".globl {nm}\n.p2align 8\n.type {nm},@function\n{nm}:\n" + f().text()
    s += '.section .rodata,"a"\n.p2align 6\n'
    s += kd("k1_kernel", 256) + ".p2align 6\n" + kd("k2_kernel", 256)
    open(out, "w").write(s)
if __name__ == "__main__":
    if len(sys.argv) > 2 and sys.argv[2] == "stamp": STAMP = True
    build(sys.argv[1])
```

```python
import sys, math, os, struct
from asmlib import *
NAME = "concat_heads__mha_block_cached__gqa_block_cached__near_ridge"
WS_O = 0
WS_P = 16 << 20
WS_F = 48 << 20
WS_STAMP = 64 << 20
SCALE_LOG2E = (128 ** -0.5) * math.log2(math.e)
def f32bits(x): return struct.unpack('<I', struct.pack('<f', x))[0]
def vr(b, n=4): return f"v[{b}:{b+n-1}]"
def env(k, d): return os.environ.get(k, d)
STAMP = False
ROT = env("ROT", "0") == "1"
ROT2 = env("ROT2", "1") == "1"
POL = {"0": "", "1": " nt", "2": " sc1", "3": " sc0 sc1", "4": " sc0"}
NT_W = POL[env("NT_W", "0")]
NT_X = POL[env("NT_X", "0")]
NT_KV = POL[env("NT_KV", "0")]
NT_WO = " nt" if env("NT_WO", "0") == "1" else ""
NT_PF = " nt" if env("NT_PF", "0") == "1" else ""
O_ST = env("O_ST", " sc0 sc1")
DIST = int(env("DIST", "2"))
DIST2 = int(env("DIST2", "2"))
KV_START = int(env("KV_START", "0"))
KV_END = int(env("KV_END", "8"))
PFWO = int(env("PFWO", "10"))
SLEEP = int(env("SLEEP", "4"))
SPIN_MAX = 200000
SX, SK, SV, SWQ, SWS, SWO, SOUT = 40, 44, 48, 52, 56, 60, 64
V_LANE, V_G, V_I16, V_RR, V_CC, V_F, V_T0, V_T1, V_T2, V_L16 = 1, 2, 3, 4, 5, 6, 7, 8, 9, 10

def srd(p, d, lo, hi, size):
    p(f"s_mov_b32 s{d}, s{lo}\ns_mov_b32 s{d+1}, s{hi}\ns_mov_b32 s{d+2}, {size}\ns_mov_b32 s{d+3}, 0x20000")
def srd_sel(p, d, a, b, size):
    p(f"s_cselect_b32 s{d}, s{a}, s{b}\ns_cselect_b32 s{d+1}, s{a+1}, s{b+1}\ns_mov_b32 s{d+2}, {size}\ns_mov_b32 s{d+3}, 0x20000")
def stamp(p, slot):
    if STAMP: p(f"s_memrealtime s[{80+2*slot}:{81+2*slot}]")
def stamp_end(p, kidx, vt):
    if STAMP and env("DBGSTAMP", "0") == "1" and kidx == 1:
        p("s_waitcnt vmcnt(0)")
        stamp(p, 6)
        p("s_waitcnt lgkmcnt(0)")
        p("s_lshl_b32 s96, s2, 2")
        p("s_or_b32 s96, s96, s3")
        p("s_cmp_lg_u32 s96, 308")
        p(f"s_cbranch_scc1 L_nost{kidx}")
        p(f"s_mov_b32 s68, s38\ns_mov_b32 s69, s39\ns_mov_b32 s70, 256\ns_mov_b32 s71, 0x20000")
        p(f"v_mov_b32 v{vt+8}, 0")
        p(f"s_mov_b32 s96, {WS_STAMP + 308*32}")
        p.raw(f"buffer_load_dwordx4 v[{vt+12}:{vt+15}], v{vt+8}, s[{SWS}:{SWS+3}], s96 offen")
        p.raw(f"buffer_load_dwordx4 v[{vt+16}:{vt+19}], v{vt+8}, s[{SWS}:{SWS+3}], s96 offen offset:16")
        for i in range(8):
            p.raw(f"v_mov_b32 v{vt+i}, s{80+2*i}")
        p.raw("s_waitcnt vmcnt(0)")
        p.raw(f"buffer_store_dwordx4 v[{vt+12}:{vt+15}], v{vt+8}, s[68:71], 0 offen")
        p.raw(f"buffer_store_dwordx4 v[{vt+16}:{vt+19}], v{vt+8}, s[68:71], 0 offen offset:16")
        p.raw(f"buffer_store_dwordx4 v[{vt}:{vt+3}], v{vt+8}, s[68:71], 0 offen offset:32")
        p.raw(f"buffer_store_dwordx4 v[{vt+4}:{vt+7}], v{vt+8}, s[68:71], 0 offen offset:48")
        p(f"L_nost{kidx}:")
        return
    if STAMP:
        p("s_waitcnt vmcnt(0)")
        stamp(p, 6)
        p("s_waitcnt lgkmcnt(0)")
        p(f"s_lshl_b32 s96, s2, 2\ns_add_u32 s96, s96, s3\ns_lshl_b32 s96, s96, 5\ns_add_u32 s96, s96, {WS_STAMP + kidx*65536}")
        for i in range(8): p(f"v_mov_b32 v{vt+i}, s{80+2*i}")
        p(f"""
        v_mov_b32 v{vt+8}, 0
        buffer_store_dwordx4 v[{vt}:{vt+3}], v{vt+8}, s[{SWS}:{SWS+3}], s96 offen
        buffer_store_dwordx4 v[{vt+4}:{vt+7}], v{vt+8}, s[{SWS}:{SWS+3}], s96 offen offset:16
        """)

def head(tag):
    p = Prog()
    p("s_cmp_ge_u32 s2, 256")
    p(f"s_cbranch_scc1 L_end_{tag}")
    if STAMP:
        for i in range(80, 96): p(f"s_mov_b32 s{i}, 0")
    stamp(p, 0)
    p("""
    s_load_dwordx16 s[16:31], s[0:1], 0
    s_load_dwordx8 s[32:39], s[0:1], 64
    s_load_dwordx2 s[14:15], s[0:1], 96
    """)
    p(f"""
    v_and_b32 v{V_LANE}, 63, v0
    v_lshrrev_b32 v{V_T0}, 6, v0
    v_lshrrev_b32 v{V_G}, 4, v{V_LANE}
    v_readfirstlane_b32 s79, v{V_T0}
    v_and_b32 v{V_I16}, 15, v0
    v_bfe_u32 v{V_RR}, v0, 2, 2
    v_and_b32 v{V_CC}, 3, v0
    v_lshlrev_b32 v{V_L16}, 4, v{V_LANE}
    s_and_b32 s3, s79, 3
    s_and_b32 s4, s2, 7
    s_lshr_b32 s5, s2, 3
    s_lshr_b32 s6, s4, 2
    s_and_b32 s7, s4, 3
    s_lshr_b32 s8, s5, 2
    s_and_b32 s9, s5, 3
    """)
    p("s_waitcnt lgkmcnt(0)")
    p("s_cmp_eq_u32 s6, 0")
    if tag == "k1":
        srd_sel(p, SX, 16, 26, 983040)
        srd_sel(p, SK, 18, 28, 6291456)
        srd_sel(p, SV, 20, 30, 6291456)
        srd_sel(p, SWQ, 22, 32, 5242880)
    srd_sel(p, SWO, 24, 34, 5242880)
    srd(p, SWS, 14, 15, 0x10000000)
    if tag == "k2": srd(p, SOUT, 36, 37, 16*48*1280*2)
    p("""
    s_lshl_b32 s16, s7, 3
    s_add_u32 s16, s16, s8
    s_lshl_b32 s17, s9, 1
    s_lshr_b32 s10, s8, 2
    s_add_u32 s17, s17, s10
    s_and_b32 s18, s8, 3
    """)
    p("s_cmp_ge_u32 s79, 4")
    p(f"s_cbranch_scc1 L_loader_{tag}")
    return p

def k1():
    NSL = 4
    LX = 65536
    hd = head("k1")
    p = Prog()
    V_XR = 11; V_TR = 13; V_TV = 21; V_KR = 29
    T3 = 37
    FR = 40; ACC = 136; TMP = 232
    p(f"""
    s_mul_i32 s10, s3, 24576
    s_add_u32 s77, s10, {LX}
    s_lshl_b32 s22, s9, 2
    s_add_u32 s22, s22, s3
    v_and_b32 v{V_T0}, 1, v{V_G}
    v_lshlrev_b32 v{V_T0}, 2, v{V_T0}
    v_or_b32 v{V_F}, v{V_RR}, v{V_T0}
    v_lshrrev_b32 v{V_T0}, 1, v{V_I16}
    v_xor_b32 v{V_T0}, v{V_T0}, v{V_G}
    v_lshlrev_b32 v{V_T1}, 7, v{V_I16}
    v_add_u32 v{V_T1}, s77, v{V_T1}
    v_lshl_add_u32 v{V_XR}, v{V_T0}, 4, v{V_T1}
    v_xor_b32 v{V_T0}, 4, v{V_T0}
    v_lshl_add_u32 v{V_XR+1}, v{V_T0}, 4, v{V_T1}
    v_lshl_add_u32 v{V_T0}, v{V_G}, 3, v{V_RR}
    v_lshlrev_b32 v{V_T0}, 8, v{V_T0}
    v_lshl_add_u32 v{V_T0}, v{V_CC}, 3, v{V_T0}
    v_lshl_add_u32 v{V_T1}, v{V_G}, 2, v{V_RR}
    v_lshlrev_b32 v{V_T1}, 8, v{V_T1}
    v_lshl_add_u32 v{V_T1}, v{V_CC}, 3, v{V_T1}
    v_add_u32 v{V_T1}, s77, v{V_T1}
    """)
    for t in range(8):
        p(f"""
        v_xor_b32 v{TMP}, {t}, v{V_F}
        v_lshl_add_u32 v{V_TR+t}, v{TMP}, 5, v{V_T0}
        v_lshl_add_u32 v{V_TV+t}, v{TMP}, 5, v{V_T1}
        """)
    p(f"""
    v_lshrrev_b32 v{V_T0}, 1, v{V_G}
    v_xor_b32 v{V_T0}, v{V_T0}, v{V_I16}
    v_and_b32 v{V_T1}, 1, v{V_G}
    v_lshlrev_b32 v{V_T1}, 3, v{V_T1}
    v_lshl_add_u32 v{V_T1}, v{V_I16}, 8, v{V_T1}
    v_add_u32 v{V_T1}, s77, v{V_T1}
    """)
    for j in range(8):
        p(f"""
        v_xor_b32 v{TMP}, {2*j}, v{V_T0}
        v_lshl_add_u32 v{V_KR+j}, v{TMP}, 4, v{V_T1}
        """)
    p(f"""
    s_mul_i32 s10, s6, 48
    s_mul_i32 s11, s22, 3
    s_add_u32 s10, s10, s11
    s_lshl_b32 s10, s10, 7
    s_lshl_b32 s11, s16, 2
    s_add_u32 s10, s10, s11
    s_lshl_b32 s24, s10, 10
    s_add_u32 s25, s24, 131072
    s_add_u32 s26, s24, 262144
    s_mov_b32 s98, {f32bits(SCALE_LOG2E)}
    """)
    def run(items):
        for x in items:
            if callable(x): x()
            else: p(x)
    def reads(s):
        c, ks = s // 2, s % 2
        it = []
        fb = FR + (s % 2) * 44
        for u in range(3):
            it.append(f"ds_read_b128 {vr(fb + 32 + u*4)}, v{V_XR + ks} offset:{(c % NSL)*6144 + u*2048}")
        off0 = (c % NSL) * 16384 + ks * 8192
        for t in range(8):
            for hf in range(2):
                it.append(f"ds_read_b64_tr_b16 {vr(fb + t*4 + 2*hf, 2)}, v{V_TR+t} offset:{off0 + hf*1024}")
        return it
    def mfmas(s, order_u=False):
        it = []
        fb = FR + (s % 2) * 44
        idx = [(t, u) for u in range(3) for t in range(8)] if order_u else [(t, u) for t in range(8) for u in range(3)]
        for t, u in idx:
            a = ACC + (t*3+u)*4
            c = "0" if s == 0 else vr(a)
            it.append(f"v_mfma_f32_16x16x32_bf16 {vr(a)}, {vr(fb + t*4)}, {vr(fb + 32 + u*4)}, {c}")
        return it
    def KF(i): return 40 + 4*i if i < 11 else 128
    def QF(i): return 84 + 4*i if i < 11 else 132
    kreads = [f"ds_read_b64 {vr(KF(kt*4+T) + 2*hf, 2)}, v{V_KR + 2*T + hf} offset:{12288 + kt*4096}" for kt in range(3) for T in range(4) for hf in range(2)]
    p("s_barrier")
    stamp(p, 1)
    run(reads(0))
    for s in range(20):
        if s % 2 == 1:
            p.wait_lg(0)
            p("s_barrier")
        side = reads(s + 1) if s < 19 else kreads
        interleave(p, mfmas(s, order_u=(s == 19)), side, ratio=1)
    stamp(p, 2)
    ST = ACC
    VF = ACC + 40
    PFR = TMP
    AO = 40
    def cvtq(u):
        it = []
        for T in range(4):
            for k in range(4):
                a = ACC + ((2*T + k//2)*3 + u)*4 + 2*(k%2)
                it.append(f"v_cvt_pk_bf16_f32 v{QF(T*3+u) + k}, v{a}, v{a+1}")
        return it
    def st(u):
        it = []
        for T in range(4):
            for kt in range(3):
                d = ST + (kt*3+u)*4
                c = "0" if T == 0 else vr(d)
                it.append(f"v_mfma_f32_16x16x32_bf16 {vr(d)}, {vr(KF(kt*4+T))}, {vr(QF(T*3+u))}, {c}")
        return it
    def sm(u):
        it = []
        vals = [ST + (kt*3+u)*4 + r for kt in range(3) for r in range(4)]
        m, t2, sm_ = T3, T3+1, T3+2
        it.append(f"v_max3_f32 v{m}, v{vals[0]}, v{vals[1]}, v{vals[2]}")
        it.append(f"v_max3_f32 v{t2}, v{vals[3]}, v{vals[4]}, v{vals[5]}")
        it.append(f"v_max3_f32 v{m}, v{m}, v{vals[6]}, v{vals[7]}")
        it.append(f"v_max3_f32 v{t2}, v{t2}, v{vals[8]}, v{vals[9]}")
        it.append(f"v_max3_f32 v{m}, v{m}, v{vals[10]}, v{vals[11]}")
        it.append(f"v_max_f32 v{m}, v{m}, v{t2}")
        it += [f"v_mov_b32 v{t2}, v{m}", f"v_permlane16_swap_b32 v{m}, v{t2}", f"v_max_f32 v{m}, v{m}, v{t2}",
               f"v_mov_b32 v{t2}, v{m}", f"v_permlane32_swap_b32 v{m}, v{t2}", f"v_max_f32 v{m}, v{m}, v{t2}",
               f"v_mul_f32 v{m}, s98, v{m}"]
        for v in vals: it.append(f"v_fma_f32 v{v}, v{v}, s98, -v{m}")
        for v in vals: it.append(f"v_exp_f32 v{v}, v{v}")
        it.append(f"v_add_f32 v{sm_}, v{vals[0]}, v{vals[1]}")
        it.append(f"v_add_f32 v{t2}, v{vals[2]}, v{vals[3]}")
        for i in range(4, 12, 2):
            it.append(f"v_add_f32 v{sm_}, v{sm_}, v{vals[i]}")
            it.append(f"v_add_f32 v{t2}, v{t2}, v{vals[i+1]}")
        it.append(f"v_add_f32 v{sm_}, v{sm_}, v{t2}")
        it += [f"v_mov_b32 v{t2}, v{sm_}", f"v_permlane16_swap_b32 v{sm_}, v{t2}", f"v_add_f32 v{sm_}, v{sm_}, v{t2}",
               f"v_mov_b32 v{t2}, v{sm_}", f"v_permlane32_swap_b32 v{sm_}, v{t2}", f"v_add_f32 v{sm_}, v{sm_}, v{t2}",
               f"v_rcp_f32 v{sm_}, v{sm_}"]
        for v in vals: it.append(f"v_mul_f32 v{v}, v{v}, v{sm_}")
        for i in range(6): it.append(f"v_cvt_pk_bf16_f32 v{PFR + u*8 + i}, v{vals[2*i]}, v{vals[2*i+1]}")
        return it
    def pv(u):
        it = []
        for t in range(8):
            d = AO + (t*3+u)*4
            it.append(f"v_mfma_f32_16x16x32_bf16 {vr(d)}, {vr(VF + t*6)}, {vr(PFR + u*8)}, 0")
        for t in range(8):
            d = AO + (t*3+u)*4
            it.append(f"v_mfma_f32_16x16x16_bf16 {vr(d)}, {vr(VF + t*6 + 4, 2)}, {vr(PFR + u*8 + 4, 2)}, {vr(d)}")
        return it
    def cvto(u):
        it = []
        for T in range(4):
            r0 = AO + ((2*T)*3 + u)*4
            r1 = AO + ((2*T+1)*3 + u)*4
            it += [f"v_cvt_pk_bf16_f32 v{r0}, v{r0}, v{r0+1}", f"v_cvt_pk_bf16_f32 v{r0+1}, v{r0+2}, v{r0+3}",
                   f"v_cvt_pk_bf16_f32 v{r0+2}, v{r1}, v{r1+1}", f"v_cvt_pk_bf16_f32 v{r0+3}, v{r1+2}, v{r1+3}",
                   f"buffer_store_dwordx4 {vr(r0)}, v{V_L16}, s[{SWS}:{SWS+3}], s{24+u} offen offset:{T*1024}{O_ST}"]
        return it
    vreads = [f"ds_read_b64_tr_b16 {vr(VF + t*6 + 2*kp, 2)}, v{V_TV+t} offset:{kp*4096}" for t in range(8) for kp in range(3)]
    run(cvtq(0))
    interleave(p, st(0), cvtq(1), ratio=2)
    interleave(p, st(1), cvtq(2), ratio=2)
    p("s_barrier")
    s0 = sm(0)
    interleave(p, st(2), vreads + s0[:12], ratio=3)
    run(s0[12:])
    interleave(p, pv(0), sm(1), ratio=5)
    interleave(p, pv(1), sm(2) , ratio=5)
    run(cvto(0))
    interleave(p, pv(2), cvto(1), ratio=2)
    run(cvto(2))
    stamp_end(p, 0, 136)
    p("s_endpgm")
    comp = p

    p = Prog()
    p("L_loader_k1:")
    p("s_cmp_ge_u32 s79, 6")
    p("s_cbranch_scc1 L_kv")
    V_DA, V_DB, V_XD, V_PF = 11, 12, 13, 16
    p(f"""
    s_and_b32 s23, s79, 1
    v_lshlrev_b32 v{V_T0}, 1, v{V_G}
    v_xor_b32 v{V_T0}, v{V_T0}, v{V_I16}
    v_lshlrev_b32 v{V_T0}, 4, v{V_T0}
    v_lshl_add_u32 v{V_DA}, v{V_G}, 13, v{V_T0}
    v_xor_b32 v{V_DB}, 0x80, v{V_DA}
    v_lshrrev_b32 v{V_T0}, 3, v{V_LANE}
    v_mul_u32_u24 v{V_T0}, 1280, v{V_T0}
    v_and_b32 v{V_T1}, 7, v{V_LANE}
    v_xor_b32 v{V_T1}, v{V_T1}, v{V_G}
    v_lshl_add_u32 v{V_XD}, v{V_T1}, 4, v{V_T0}
    v_xor_b32 v{V_T1}, 4, v{V_T1}
    v_lshl_add_u32 v{V_XD+1}, v{V_T1}, 4, v{V_T0}
    s_lshl_b32 s24, s16, 8
    s_lshl_b32 s10, s23, 18
    s_add_u32 s24, s24, s10
    s_lshl_b32 s25, s23, 13
    s_lshl_b32 s22, s9, 2
    s_lshl_b32 s10, s23, 1
    s_add_u32 s22, s22, s10
    s_mul_i32 s26, s22, 61440
    s_mul_i32 s77, s23, 49152
    s_add_u32 s77, s77, {LX}
    s_mul_i32 s10, s9, 5
    s_lshr_b32 s10, s10, 1
    s_mul_i32 s11, s8, 5
    s_lshr_b32 s11, s11, 2
    s_add_u32 s72, s10, s11
    s_cmp_ge_u32 s72, 10
    s_cselect_b32 s10, 10, 0
    s_sub_u32 s72, s72, s10
    """)
    if not ROT: p("s_mov_b32 s72, 0")
    def chunk_loads(c):
        if c > 0:
            p("s_add_u32 s72, s72, 1\ns_cmp_ge_u32 s72, 10\ns_cselect_b32 s10, 10, 0\ns_sub_u32 s72, s72, s10")
        p("s_lshl_b32 s73, s72, 19\ns_add_u32 s73, s73, s24\ns_lshl_b32 s74, s72, 7\ns_add_u32 s74, s74, s26")
        for i in range(8):
            p(f"s_add_u32 m0, s25, {(c % NSL)*16384 + i*1024}")
            p(f"s_add_u32 s97, s73, {(4*i) * 8192}")
            p(f"buffer_load_dwordx4 v{V_DA if (i % 4) < 2 else V_DB}, s[{SWQ}:{SWQ+3}], s97 offen{NT_W} lds", tag=f"c{c}")
        for ww in range(2):
            for j in range(6):
                p(f"s_add_u32 m0, s77, {ww*24576 + (c % NSL)*6144 + j*1024}")
                p(f"s_add_u32 s97, s74, {ww*61440 + j * 10240}")
                p(f"buffer_load_dwordx4 v{V_XD + j % 2}, s[{SX}:{SX+3}], s97 offen{NT_X} lds", tag=f"c{c}")
    def pf_wo():
        p(f"""
        s_lshl_b32 s10, s5, 1
        s_add_u32 s10, s10, s23
        s_lshl_b32 s11, s7, 6
        s_add_u32 s10, s10, s11
        s_mul_i32 s75, s10, 20480
        v_lshlrev_b32 v{V_PF}, 7, v{V_LANE}
        v_add_u32 v{V_PF+1}, 8192, v{V_PF}
        v_add_u32 v{V_PF+2}, 16384, v{V_PF}
        v_cmp_lt_u32 vcc, 31, v{V_LANE}
        v_cndmask_b32 v{V_PF+2}, v{V_PF+2}, -1, vcc
        buffer_load_dword v{V_PF+4}, v{V_PF}, s[{SWO}:{SWO+3}], s75 offen{NT_PF}
        buffer_load_dword v{V_PF+5}, v{V_PF+1}, s[{SWO}:{SWO+3}], s75 offen{NT_PF}
        buffer_load_dword v{V_PF+6}, v{V_PF+2}, s[{SWO}:{SWO+3}], s75 offen{NT_PF}
        """)
    p(f"""
    s_lshl_b32 s10, s2, 7
    s_add_u32 s10, s10, {WS_F}
    v_mov_b32 v{V_PF}, 0
    buffer_store_dword v{V_PF}, v{V_PF}, s[{SWS}:{SWS+3}], s10 offen
    """)
    for c in range(DIST): chunk_loads(c)
    for c in range(10):
        p.wait_tag(f"c{c}"); p("s_barrier")
        if c + DIST < 10: chunk_loads(c + DIST)
        if c == PFWO: pf_wo()
    p("s_barrier")
    if PFWO == 10: pf_wo()
    p("s_barrier")
    if PFWO == 11: pf_wo()
    p("s_endpgm")
    load1 = p
    p = Prog()
    p("L_kv:")
    V_VA, V_VB, V_WR, V_KD = 11, 12, 13, 14
    RS = 32
    p(f"""
    s_and_b32 s23, s79, 1
    v_lshlrev_b32 v{V_T0}, 1, v{V_G}
    v_xor_b32 v{V_T0}, v{V_T0}, v{V_I16}
    v_lshlrev_b32 v{V_T0}, 4, v{V_T0}
    v_lshl_add_u32 v{V_VA}, v{V_G}, 8, v{V_T0}
    v_xor_b32 v{V_VB}, 0x80, v{V_VA}
    s_mul_i32 s77, s23, 49152
    s_add_u32 s77, s77, {LX}
    v_add_u32 v{V_WR}, s77, v{V_L16}
    v_xor_b32 v{V_T0}, v{V_G}, v{V_I16}
    v_lshlrev_b32 v{V_T0}, 4, v{V_T0}
    v_lshl_add_u32 v{V_KD}, v{V_G}, 8, v{V_T0}
    v_xor_b32 v{V_KD+1}, 0x40, v{V_KD}
    v_xor_b32 v{V_KD+2}, 0x80, v{V_KD}
    v_xor_b32 v{V_KD+3}, 0xc0, v{V_KD}
    s_lshl_b32 s22, s9, 2
    s_lshl_b32 s10, s23, 1
    s_add_u32 s22, s22, s10
    s_lshl_b32 s10, s22, 5
    s_add_u32 s10, s10, s16
    s_mul_i32 s24, s10, 12288
    s_add_u32 s25, s24, 4096
    s_add_u32 s26, s24, 8192
    s_add_u32 s27, s24, 393216
    s_add_u32 s28, s27, 4096
    s_add_u32 s29, s27, 8192
    """)
    kv = []
    for ww in range(2):
        kv += [f"buffer_load_dwordx4 {vr(RS + ww*96 + i*4)}, v{V_KD + i % 4}, s[{SK}:{SK+3}], s{24 + 3*ww + i//4} offen offset:{(i%4)*1024}{NT_KV}" for i in range(12)]
    for ww in range(2):
        kv += [f"buffer_load_dwordx4 {vr(RS + ww*96 + 48 + i*4)}, v{V_VA if i % 2 == 0 else V_VB}, s[{SV}:{SV+3}], s{24 + 3*ww + i//4} offen offset:{(i%4)*1024}{NT_KV}" for i in range(12)]
    nb = KV_END - KV_START
    per = (len(kv) + nb - 1) // nb
    for c in range(-1, 10):
        if c >= 0: p("s_barrier")
        if c >= KV_START:
            for x in kv[:per]: p(x)
            kv = kv[per:]
    for x in kv: p(x)
    for ww in range(2):
        for i in range(12):
            p(f"ds_write_b128 v{V_WR}, {vr(RS + ww*96 + i*4)} offset:{ww*24576 + 12288 + i*1024}")
    p.wait_lg(0)
    p("s_barrier")
    for ww in range(2):
        for i in range(12):
            p(f"ds_write_b128 v{V_WR}, {vr(RS + ww*96 + 48 + i*4)} offset:{ww*24576 + i*1024}")
    p.wait_lg(0)
    p("s_barrier")
    p("L_end_k1:")
    p("s_endpgm")
    load2 = p
    for q in (hd, comp, load1, load2): q.finalize()
    hd.ins = hd.ins + comp.ins + load1.ins + load2.ins
    return hd

def k2():
    NS = 5
    hd = head("k2")
    p = Prog()
    V_A = 11; V_B = 26; V_OUT = 29
    FR2 = 32; ACC2 = 96; D = 156
    p("""
    s_lshr_b32 s10, s3, 1
    s_and_b32 s11, s3, 1
    """)
    p(f"""
    v_lshl_add_u32 v{V_T0}, v{V_G}, 2, v{V_RR}
    v_mul_u32_u24 v{V_T0}, 320, v{V_T0}
    v_lshl_add_u32 v{V_T0}, v{V_CC}, 3, v{V_T0}
    v_and_b32 v{V_T1}, 1, v{V_G}
    s_mul_i32 s13, s11, 5
    """)
    for tt in range(5):
        p(f"""
        s_add_u32 s12, s13, {tt}
        v_xor_b32 v{V_T2}, s12, v{V_T1}
        v_lshl_add_u32 v{V_A+tt}, v{V_T2}, 5, v{V_T0}
        v_add_u32 v{V_A+5+tt}, 0x10000, v{V_A+tt}
        v_add_u32 v{V_A+10+tt}, 0x20000, v{V_A+tt}
        """)
    p(f"""
    s_mul_i32 s13, s10, 6144
    v_add_u32 v{V_B}, s13, v{V_L16}
    v_add_u32 v{V_B+1}, 0x10000, v{V_B}
    v_add_u32 v{V_B+2}, 0x20000, v{V_B}
    v_mul_u32_u24 v{V_OUT}, 2560, v{V_I16}
    v_lshl_add_u32 v{V_OUT}, v{V_G}, 3, v{V_OUT}
    s_lshl_b32 s13, s6, 3
    s_add_u32 s13, s13, s17
    s_lshl_b32 s13, s13, 2
    s_add_u32 s13, s13, s18
    s_lshl_b32 s13, s13, 4
    s_add_u32 s13, s13, s3
    s_mul_i32 s27, s13, 15360
    s_add_u32 s27, s27, {WS_P}
    s_mul_i32 s12, s7, 61440
    s_add_u32 s28, s27, s12
    s_mul_i32 s13, s17, 96
    s_mul_i32 s12, s10, 48
    s_add_u32 s13, s13, s12
    s_mul_i32 s29, s13, 2560
    s_mul_i32 s13, s6, 1280
    s_add_u32 s29, s29, s13
    s_mul_i32 s13, s18, 320
    s_add_u32 s29, s29, s13
    s_mul_i32 s13, s11, 160
    s_add_u32 s29, s29, s13
    """)
    def run(items):
        for x in items:
            if callable(x): x()
            else: p(x)
    def reads2(s):
        c, ks = s // 2, s % 2
        base = (c % NS) * 32768
        fb = FR2 + (s % 2) * 32
        it = []
        for u in range(3):
            if env("K2_NOB", "0") == "1" and s > 1: break
            off = base + (u*2 + ks) * 1024
            it.append(f"ds_read_b128 {vr(fb + 20 + u*4)}, v{V_B + off // 65536} offset:{off % 65536}")
        for tt in range(5):
            if env("K2_NOA", "0") == "1" and s > 1: break
            for hf in range(2):
                off = base + 12288 + ks*10240 + hf*5120
                it.append(f"ds_read_b64_tr_b16 {vr(fb + tt*4 + 2*hf, 2)}, v{V_A + 5*(off // 65536) + tt} offset:{off % 65536}")
        return it
    def mfmas2(s):
        fb = FR2 + (s % 2) * 32
        it = []
        for tt in range(5):
            for u in range(3):
                a = ACC2 + (tt*3+u)*4
                c = "0" if s == 0 else vr(a)
                it.append(f"v_mfma_f32_16x16x32_bf16 {vr(a)}, {vr(fb + tt*4)}, {vr(fb + 20 + u*4)}, {c}")
        return it
    p("s_barrier")
    stamp(p, 1)
    run(reads2(0))
    for s in range(32):
        if s % 2 == 1 and s < 31: p("s_barrier")
        side = reads2(s + 1) if s < 31 else []
        interleave(p, mfmas2(s), side, ratio=1)
    stamp(p, 2)
    p("s_nop 15")
    for q in range(4):
        p(f"s_cmp_eq_u32 s7, {q}")
        p(f"s_cbranch_scc1 L_skipq{q}")
        p(f"s_add_u32 s30, s28, {q*4096}")
        for i in range(4):
            tile = 4*q + i
            if tile < 15:
                p.raw(f"buffer_store_dwordx4 {vr(ACC2 + tile*4)}, v{V_L16}, s[{SWS}:{SWS+3}], s30 offen offset:{i*1024} sc1")
        p(f"L_skipq{q}:")
    for q in range(4):
        p(f"s_cmp_lg_u32 s7, {q}")
        p(f"s_cbranch_scc1 L_nown{q}")
        for i in range(4):
            tile = min(4*q + i, 14)
            for r in range(4):
                p.raw(f"v_mov_b32 v{FR2 + i*4 + r}, v{ACC2 + tile*4 + r}")
        p(f"L_nown{q}:")
    p("s_waitcnt vmcnt(0)")
    stamp(p, 3)
    p("s_barrier")
    p("s_barrier")
    stamp(p, 4)
    p("s_lshl_b32 s31, s7, 12")
    p("s_add_u32 s31, s31, s27")
    for jj in range(3):
        p(f"s_add_u32 s30, s7, {jj+1}\ns_and_b32 s30, s30, 3\ns_mul_i32 s30, s30, 61440\ns_add_u32 s30, s30, s31")
        for i in range(4):
            p(f"buffer_load_dwordx4 {vr(D + (jj*4+i)*4)}, v{V_L16}, s[{SWS}:{SWS+3}], s30 offen offset:{i*1024} sc1")
    for i in range(4):
        if i == 3:
            p("s_cmp_eq_u32 s7, 3")
            p("s_cbranch_scc1 L_fin")
        p(f"""
        s_lshl_b32 s13, s7, 2
        s_add_u32 s13, s13, {i}
        s_mul_i32 s12, s13, 11
        s_lshr_b32 s12, s12, 5
        s_mul_i32 s11, s12, 3
        s_sub_u32 s13, s13, s11
        s_mul_i32 s13, s13, 40960
        s_lshl_b32 s12, s12, 5
        s_add_u32 s13, s13, s12
        s_add_u32 s30, s29, s13
        """)
        b0 = FR2 + i*4
        b1, b2, b3 = [D + (j*4+i)*4 for j in range(3)]
        for r in range(4):
            p(f"v_add_f32 v{b0+r}, v{b0+r}, v{b1+r}")
            p(f"v_add_f32 v{b2+r}, v{b2+r}, v{b3+r}")
            p(f"v_add_f32 v{b0+r}, v{b0+r}, v{b2+r}")
        p(f"v_cvt_pk_bf16_f32 v{b1}, v{b0}, v{b0+1}")
        p(f"v_cvt_pk_bf16_f32 v{b1+1}, v{b0+2}, v{b0+3}")
        p(f"buffer_store_dwordx2 {vr(b1, 2)}, v{V_OUT}, s[{SOUT}:{SOUT+3}], s30 offen")
    p("L_fin:")
    stamp_end(p, 1, 60)
    p("s_endpgm")
    comp = p
    p = Prog()
    p("L_loader_k2:")
    V_WO = 11; V_FL = 16; V_FD = 18
    p("s_movk_i32 s12, 3277")
    for j in range(5):
        p(f"""
        v_add_u32 v{V_T0}, {64*j}, v{V_LANE}
        v_mul_u32_u24 v{V_T1}, s12, v{V_T0}
        v_lshrrev_b32 v{V_T1}, 16, v{V_T1}
        v_mul_u32_u24 v{V_T2}, 20, v{V_T1}
        v_sub_u32 v{V_T0}, v{V_T0}, v{V_T2}
        v_bfe_u32 v{V_T2}, v{V_T1}, 2, 1
        v_lshlrev_b32 v{V_T2}, 1, v{V_T2}
        v_xor_b32 v{V_T0}, v{V_T0}, v{V_T2}
        v_lshlrev_b32 v{V_T0}, 4, v{V_T0}
        v_mul_u32_u24 v{V_T1}, 1280, v{V_T1}
        v_add_u32 v{V_WO+j}, v{V_T0}, v{V_T1}
        """)
    p(f"""
    s_lshr_b32 s10, s3, 1
    s_and_b32 s11, s3, 1
    s_mul_i32 s13, s6, 48
    s_mul_i32 s12, s17, 6
    s_add_u32 s13, s13, s12
    s_mul_i32 s12, s10, 3
    s_add_u32 s13, s13, s12
    s_lshl_b32 s13, s13, 7
    s_lshl_b32 s12, s7, 5
    s_add_u32 s13, s13, s12
    s_add_u32 s13, s13, s11
    s_lshl_b32 s24, s13, 10
    s_mul_i32 s13, s10, 6
    s_add_u32 s13, s13, s11
    s_lshl_b32 s25, s13, 10
    s_lshl_b32 s13, s7, 10
    s_lshl_b32 s12, s3, 4
    s_add_u32 s13, s13, s12
    s_mul_i32 s13, s13, 1280
    s_mul_i32 s12, s18, 320
    s_add_u32 s26, s13, s12
    s_mul_i32 s13, s3, 5120
    s_add_u32 s27, s13, 12288
    s_lshl_b32 s72, s18, 2
    s_lshl_b32 s13, s17, 1
    s_add_u32 s72, s72, s13
    s_and_b32 s72, s72, 15
    """)
    if not ROT2: p("s_mov_b32 s72, 0")
    p(f"""
    s_lshl_b32 s10, s2, 7
    s_add_u32 s10, s10, {WS_F}
    v_mov_b32 v{V_FL}, s10
    s_and_b32 s10, s2, 0xfc
    s_lshl_b32 s10, s10, 7
    s_add_u32 s10, s10, {WS_F}
    v_and_b32 v{V_T0}, 3, v{V_LANE}
    v_lshlrev_b32 v{V_T0}, 7, v{V_T0}
    v_add_u32 v{V_FL+1}, s10, v{V_T0}
    """)
    def dma(c):
        slot = c % NS
        p(f"s_add_u32 s73, s72, {c}\ns_and_b32 s73, s73, 15")
        p("s_mul_i32 s74, s73, 81920\ns_add_u32 s74, s74, s26")
        p("s_lshl_b32 s73, s73, 11\ns_add_u32 s73, s73, s24")
        for i in range(3):
            p(f"s_add_u32 m0, s25, {slot*32768 + i*2048}")
            p(f"s_add_u32 s97, s73, {WS_O + i*131072}")
            p(f"buffer_load_dwordx4 v{V_L16}, s[{SWS}:{SWS+3}], s97 offen lds", tag=f"c{c}")
        for j in range(5):
            p(f"s_add_u32 m0, s27, {slot*32768 + j*1024}")
            p("s_nop 0")
            p(f"buffer_load_dwordx4 v{V_WO+j}, s[{SWO}:{SWO+3}], s74 offen{NT_WO} lds", tag=f"c{c}")
    nxt = 0
    for c in range(DIST2): dma(c); nxt += 1
    for c in range(16):
        p.wait_tag(f"c{c}"); p("s_barrier")
        if nxt <= min(15, c + DIST2): dma(nxt); nxt += 1
    p("s_cmp_lg_u32 s79, 4")
    p("s_cbranch_scc1 L_end_k2")
    p.raw("s_barrier")
    p.raw(f"v_mov_b32 v{V_FD}, 1")
    p.raw(f"buffer_store_dword v{V_FD}, v{V_FL}, s[{SWS}:{SWS+3}], 0 offen sc1")
    p.raw(f"s_mov_b32 s76, {SPIN_MAX}")
    p.raw("L_poll2:")
    p.raw(f"buffer_load_dword v{V_FD}, v{V_FL+1}, s[{SWS}:{SWS+3}], 0 offen sc1")
    p.raw("s_waitcnt vmcnt(0)")
    p.raw(f"v_cmp_ne_u32 vcc, 1, v{V_FD}")
    p.raw("s_nop 4")
    p.raw("s_cmp_eq_u64 vcc, 0")
    p.raw("s_cbranch_scc1 L_done2")
    p.raw(f"s_sleep {SLEEP}")
    p.raw("s_sub_u32 s76, s76, 1")
    p.raw("s_cmp_lg_u32 s76, 0")
    p.raw("s_cbranch_scc1 L_poll2")
    p.raw("L_done2:")
    p.raw("s_barrier")
    p("L_end_k2:")
    p("s_endpgm")
    load = p
    for q in (hd, comp, load): q.finalize()
    hd.ins = hd.ins + comp.ins + load.ins
    return hd

def kd(name, vgpr, sgpr=100):
    return f""".amdhsa_kernel {name}
  .amdhsa_next_free_vgpr {vgpr}
  .amdhsa_next_free_sgpr {sgpr}
  .amdhsa_accum_offset {vgpr}
  .amdhsa_group_segment_fixed_size 0
  .amdhsa_kernarg_size 104
  .amdhsa_user_sgpr_count 2
  .amdhsa_user_sgpr_kernarg_segment_ptr 1
  .amdhsa_system_sgpr_workgroup_id_x 1
.end_amdhsa_kernel
"""
def build(out):
    hdr = open("cdna_kernels/" + NAME + ".s.ref").read().split("; Override launch")[0]
    s = hdr
    s += "; @launch kernel=k1_kernel grid=(256,1,1) block=(512,1,1) lds=163840\n"
    s += "; @launch kernel=k2_kernel grid=(256,1,1) block=(512,1,1) lds=163840\n"
    s += '.amdgcn_target "amdgcn-amd-amdhsa--gfx950"\n.text\n'
    for nm, f in (("k1_kernel", k1), ("k2_kernel", k2)):
        s += f".globl {nm}\n.p2align 8\n.type {nm},@function\n{nm}:\n" + f().text()
    s += '.section .rodata,"a"\n.p2align 6\n'
    s += kd("k1_kernel", 256) + ".p2align 6\n" + kd("k2_kernel", 256)
    open(out, "w").write(s)
if __name__ == "__main__":
    if len(sys.argv) > 2 and sys.argv[2] == "stamp": STAMP = True
    build(sys.argv[1])
```

```python
import sys, math, os, struct
from asmlib import *
NAME = "concat_heads__mha_block_cached__gqa_block_cached__near_ridge"
WS_O = 0
WS_P = 16 << 20
WS_F = 48 << 20
WS_STAMP = 64 << 20
SCALE_LOG2E = (128 ** -0.5) * math.log2(math.e)
def f32bits(x): return struct.unpack('<I', struct.pack('<f', x))[0]
def vr(b, n=4): return f"v[{b}:{b+n-1}]"
def env(k, d): return os.environ.get(k, d)
STAMP = False
ROT = env("ROT", "0") == "1"
ROT2 = env("ROT2", "1") == "1"
POL = {"0": "", "1": " nt", "2": " sc1", "3": " sc0 sc1", "4": " sc0"}
NT_W = POL[env("NT_W", "0")]
NT_X = POL[env("NT_X", "0")]
NT_KV = POL[env("NT_KV", "0")]
NT_WO = " nt" if env("NT_WO", "0") == "1" else ""
NT_PF = " nt" if env("NT_PF", "0") == "1" else ""
O_ST = env("O_ST", " sc0 sc1")
DIST = int(env("DIST", "2"))
DIST2 = int(env("DIST2", "2"))
KV_START = int(env("KV_START", "0"))
KV_END = int(env("KV_END", "8"))
PFWO = int(env("PFWO", "10"))
SLEEP = int(env("SLEEP", "4"))
SPIN_MAX = 200000
NCPF = 2
SX, SK, SV, SWQ, SWS, SWO, SOUT = 40, 44, 48, 52, 56, 60, 64
V_LANE, V_G, V_I16, V_RR, V_CC, V_F, V_T0, V_T1, V_T2, V_L16 = 1, 2, 3, 4, 5, 6, 7, 8, 9, 10

def srd(p, d, lo, hi, size):
    p(f"s_mov_b32 s{d}, s{lo}\ns_mov_b32 s{d+1}, s{hi}\ns_mov_b32 s{d+2}, {size}\ns_mov_b32 s{d+3}, 0x20000")
def srd_sel(p, d, a, b, size):
    p(f"s_cselect_b32 s{d}, s{a}, s{b}\ns_cselect_b32 s{d+1}, s{a+1}, s{b+1}\ns_mov_b32 s{d+2}, {size}\ns_mov_b32 s{d+3}, 0x20000")
def stamp(p, slot):
    if STAMP: p(f"s_memrealtime s[{80+2*slot}:{81+2*slot}]")
def stamp_end(p, kidx, vt):
    if STAMP and env("DBGSTAMP", "0") == "1" and kidx == 1:
        p("s_waitcnt vmcnt(0)")
        stamp(p, 6)
        p("s_waitcnt lgkmcnt(0)")
        p("s_lshl_b32 s96, s2, 2")
        p("s_or_b32 s96, s96, s3")
        p("s_cmp_lg_u32 s96, 308")
        p(f"s_cbranch_scc1 L_nost{kidx}")
        p(f"s_mov_b32 s68, s38\ns_mov_b32 s69, s39\ns_mov_b32 s70, 256\ns_mov_b32 s71, 0x20000")
        p(f"v_mov_b32 v{vt+8}, 0")
        p(f"s_mov_b32 s96, {WS_STAMP + 308*32}")
        p.raw(f"buffer_load_dwordx4 v[{vt+12}:{vt+15}], v{vt+8}, s[{SWS}:{SWS+3}], s96 offen")
        p.raw(f"buffer_load_dwordx4 v[{vt+16}:{vt+19}], v{vt+8}, s[{SWS}:{SWS+3}], s96 offen offset:16")
        for i in range(8):
            p.raw(f"v_mov_b32 v{vt+i}, s{80+2*i}")
        p.raw("s_waitcnt vmcnt(0)")
        p.raw(f"buffer_store_dwordx4 v[{vt+12}:{vt+15}], v{vt+8}, s[68:71], 0 offen")
        p.raw(f"buffer_store_dwordx4 v[{vt+16}:{vt+19}], v{vt+8}, s[68:71], 0 offen offset:16")
        p.raw(f"buffer_store_dwordx4 v[{vt}:{vt+3}], v{vt+8}, s[68:71], 0 offen offset:32")
        p.raw(f"buffer_store_dwordx4 v[{vt+4}:{vt+7}], v{vt+8}, s[68:71], 0 offen offset:48")
        p(f"L_nost{kidx}:")
        return
    if STAMP:
        p("s_waitcnt vmcnt(0)")
        stamp(p, 6)
        p("s_waitcnt lgkmcnt(0)")
        p(f"s_lshl_b32 s96, s2, 2\ns_add_u32 s96, s96, s3\ns_lshl_b32 s96, s96, 5\ns_add_u32 s96, s96, {WS_STAMP + kidx*65536}")
        for i in range(8): p(f"v_mov_b32 v{vt+i}, s{80+2*i}")
        p(f"""
        v_mov_b32 v{vt+8}, 0
        buffer_store_dwordx4 v[{vt}:{vt+3}], v{vt+8}, s[{SWS}:{SWS+3}], s96 offen
        buffer_store_dwordx4 v[{vt+4}:{vt+7}], v{vt+8}, s[{SWS}:{SWS+3}], s96 offen offset:16
        """)

def head(tag):
    p = Prog()
    p("s_cmp_ge_u32 s2, 256")
    p(f"s_cbranch_scc1 L_end_{tag}")
    if STAMP:
        for i in range(80, 96): p(f"s_mov_b32 s{i}, 0")
    stamp(p, 0)
    p("""
    s_load_dwordx16 s[16:31], s[0:1], 0
    s_load_dwordx8 s[32:39], s[0:1], 64
    s_load_dwordx2 s[14:15], s[0:1], 96
    """)
    p(f"""
    v_and_b32 v{V_LANE}, 63, v0
    v_lshrrev_b32 v{V_T0}, 6, v0
    v_lshrrev_b32 v{V_G}, 4, v{V_LANE}
    v_readfirstlane_b32 s79, v{V_T0}
    v_and_b32 v{V_I16}, 15, v0
    v_bfe_u32 v{V_RR}, v0, 2, 2
    v_and_b32 v{V_CC}, 3, v0
    v_lshlrev_b32 v{V_L16}, 4, v{V_LANE}
    s_and_b32 s3, s79, 3
    s_and_b32 s4, s2, 7
    s_lshr_b32 s5, s2, 3
    s_lshr_b32 s6, s4, 2
    s_and_b32 s7, s4, 3
    s_lshr_b32 s8, s5, 2
    s_and_b32 s9, s5, 3
    """)
    p("s_waitcnt lgkmcnt(0)")
    p("s_cmp_eq_u32 s6, 0")
    if tag == "k1":
        srd_sel(p, SX, 16, 26, 983040)
        srd_sel(p, SK, 18, 28, 6291456)
        srd_sel(p, SV, 20, 30, 6291456)
        srd_sel(p, SWQ, 22, 32, 5242880)
    srd_sel(p, SWO, 24, 34, 5242880)
    srd(p, SWS, 14, 15, 0x10000000)
    if tag == "k2": srd(p, SOUT, 36, 37, 16*48*1280*2)
    p("""
    s_lshl_b32 s16, s7, 3
    s_add_u32 s16, s16, s8
    s_lshl_b32 s17, s9, 1
    s_lshr_b32 s10, s8, 2
    s_add_u32 s17, s17, s10
    s_and_b32 s18, s8, 3
    """)
    p("s_cmp_ge_u32 s79, 4")
    p(f"s_cbranch_scc1 L_loader_{tag}")
    return p

def k1():
    NSL = 4
    LX = 65536
    hd = head("k1")
    p = Prog()
    V_XR = 11; V_TR = 13; V_TV = 21; V_KR = 29
    T3 = 37
    FR = 40; ACC = 136; TMP = 232
    if env("CODEPF", "1") == "1":
        p("s_getpc_b64 s[30:31]")
        p("L_pc0:")
        p("s_mov_b32 s10, (L_code_end - L_pc0 - 4)")
        p(f"v_lshlrev_b32 v{TMP}, 7, v{V_LANE}")
        p(f"s_lshl_b32 s11, s3, 13")
        p(f"v_add_u32 v{TMP}, s11, v{TMP}")
        for i in range(NCPF):
            p(f"v_add_u32 v{TMP+1}, {i*32768}, v{TMP}")
            p(f"v_min_u32 v{TMP+1}, s10, v{TMP+1}")
            p(f"global_load_dword v{TMP+2+i}, v{TMP+1}, s[30:31]")
    p(f"""
    s_mul_i32 s10, s3, 24576
    s_add_u32 s77, s10, {LX}
    s_lshl_b32 s22, s9, 2
    s_add_u32 s22, s22, s3
    v_and_b32 v{V_T0}, 1, v{V_G}
    v_lshlrev_b32 v{V_T0}, 2, v{V_T0}
    v_or_b32 v{V_F}, v{V_RR}, v{V_T0}
    v_lshrrev_b32 v{V_T0}, 1, v{V_I16}
    v_xor_b32 v{V_T0}, v{V_T0}, v{V_G}
    v_lshlrev_b32 v{V_T1}, 7, v{V_I16}
    v_add_u32 v{V_T1}, s77, v{V_T1}
    v_lshl_add_u32 v{V_XR}, v{V_T0}, 4, v{V_T1}
    v_xor_b32 v{V_T0}, 4, v{V_T0}
    v_lshl_add_u32 v{V_XR+1}, v{V_T0}, 4, v{V_T1}
    v_lshl_add_u32 v{V_T0}, v{V_G}, 3, v{V_RR}
    v_lshlrev_b32 v{V_T0}, 8, v{V_T0}
    v_lshl_add_u32 v{V_T0}, v{V_CC}, 3, v{V_T0}
    v_lshl_add_u32 v{V_T1}, v{V_G}, 2, v{V_RR}
    v_lshlrev_b32 v{V_T1}, 8, v{V_T1}
    v_lshl_add_u32 v{V_T1}, v{V_CC}, 3, v{V_T1}
    v_add_u32 v{V_T1}, s77, v{V_T1}
    """)
    for t in range(8):
        p(f"""
        v_xor_b32 v{TMP}, {t}, v{V_F}
        v_lshl_add_u32 v{V_TR+t}, v{TMP}, 5, v{V_T0}
        v_lshl_add_u32 v{V_TV+t}, v{TMP}, 5, v{V_T1}
        """)
    p(f"""
    v_lshrrev_b32 v{V_T0}, 1, v{V_G}
    v_xor_b32 v{V_T0}, v{V_T0}, v{V_I16}
    v_and_b32 v{V_T1}, 1, v{V_G}
    v_lshlrev_b32 v{V_T1}, 3, v{V_T1}
    v_lshl_add_u32 v{V_T1}, v{V_I16}, 8, v{V_T1}
    v_add_u32 v{V_T1}, s77, v{V_T1}
    """)
    for j in range(8):
        p(f"""
        v_xor_b32 v{TMP}, {2*j}, v{V_T0}
        v_lshl_add_u32 v{V_KR+j}, v{TMP}, 4, v{V_T1}
        """)
    p(f"""
    s_mul_i32 s10, s6, 48
    s_mul_i32 s11, s22, 3
    s_add_u32 s10, s10, s11
    s_lshl_b32 s10, s10, 7
    s_lshl_b32 s11, s16, 2
    s_add_u32 s10, s10, s11
    s_lshl_b32 s24, s10, 10
    s_add_u32 s25, s24, 131072
    s_add_u32 s26, s24, 262144
    s_mov_b32 s98, {f32bits(SCALE_LOG2E)}
    """)
    def run(items):
        for x in items:
            if callable(x): x()
            else: p(x)
    def reads(s):
        c, ks = s // 2, s % 2
        it = []
        fb = FR + (s % 2) * 44
        for u in range(3):
            it.append(f"ds_read_b128 {vr(fb + 32 + u*4)}, v{V_XR + ks} offset:{(c % NSL)*6144 + u*2048}")
        off0 = (c % NSL) * 16384 + ks * 8192
        for t in range(8):
            for hf in range(2):
                it.append(f"ds_read_b64_tr_b16 {vr(fb + t*4 + 2*hf, 2)}, v{V_TR+t} offset:{off0 + hf*1024}")
        return it
    def mfmas(s, order_u=False):
        it = []
        fb = FR + (s % 2) * 44
        idx = [(t, u) for u in range(3) for t in range(8)] if order_u else [(t, u) for t in range(8) for u in range(3)]
        for t, u in idx:
            a = ACC + (t*3+u)*4
            c = "0" if s == 0 else vr(a)
            it.append(f"v_mfma_f32_16x16x32_bf16 {vr(a)}, {vr(fb + t*4)}, {vr(fb + 32 + u*4)}, {c}")
        return it
    def KF(i): return 40 + 4*i if i < 11 else 128
    def QF(i): return 84 + 4*i if i < 11 else 132
    kreads = [f"ds_read_b64 {vr(KF(kt*4+T) + 2*hf, 2)}, v{V_KR + 2*T + hf} offset:{12288 + kt*4096}" for kt in range(3) for T in range(4) for hf in range(2)]
    p("s_barrier")
    stamp(p, 1)
    run(reads(0))
    for s in range(20):
        if s % 2 == 1:
            p.wait_lg(0)
            p("s_barrier")
        side = reads(s + 1) if s < 19 else kreads
        interleave(p, mfmas(s, order_u=(s == 19)), side, ratio=1)
    stamp(p, 2)
    ST = ACC
    VF = ACC + 40
    PFR = TMP
    AO = 40
    def cvtq(u):
        it = []
        for T in range(4):
            for k in range(4):
                a = ACC + ((2*T + k//2)*3 + u)*4 + 2*(k%2)
                it.append(f"v_cvt_pk_bf16_f32 v{QF(T*3+u) + k}, v{a}, v{a+1}")
        return it
    def st(u):
        it = []
        for T in range(4):
            for kt in range(3):
                d = ST + (kt*3+u)*4
                c = "0" if T == 0 else vr(d)
                it.append(f"v_mfma_f32_16x16x32_bf16 {vr(d)}, {vr(KF(kt*4+T))}, {vr(QF(T*3+u))}, {c}")
        return it
    def sm(u):
        it = []
        vals = [ST + (kt*3+u)*4 + r for kt in range(3) for r in range(4)]
        m, t2, sm_ = T3, T3+1, T3+2
        it.append(f"v_max3_f32 v{m}, v{vals[0]}, v{vals[1]}, v{vals[2]}")
        it.append(f"v_max3_f32 v{t2}, v{vals[3]}, v{vals[4]}, v{vals[5]}")
        it.append(f"v_max3_f32 v{m}, v{m}, v{vals[6]}, v{vals[7]}")
        it.append(f"v_max3_f32 v{t2}, v{t2}, v{vals[8]}, v{vals[9]}")
        it.append(f"v_max3_f32 v{m}, v{m}, v{vals[10]}, v{vals[11]}")
        it.append(f"v_max_f32 v{m}, v{m}, v{t2}")
        it += [f"v_mov_b32 v{t2}, v{m}", f"v_permlane16_swap_b32 v{m}, v{t2}", f"v_max_f32 v{m}, v{m}, v{t2}",
               f"v_mov_b32 v{t2}, v{m}", f"v_permlane32_swap_b32 v{m}, v{t2}", f"v_max_f32 v{m}, v{m}, v{t2}",
               f"v_mul_f32 v{m}, s98, v{m}"]
        for v in vals: it.append(f"v_fma_f32 v{v}, v{v}, s98, -v{m}")
        for v in vals: it.append(f"v_exp_f32 v{v}, v{v}")
        it.append(f"v_add_f32 v{sm_}, v{vals[0]}, v{vals[1]}")
        it.append(f"v_add_f32 v{t2}, v{vals[2]}, v{vals[3]}")
        for i in range(4, 12, 2):
            it.append(f"v_add_f32 v{sm_}, v{sm_}, v{vals[i]}")
            it.append(f"v_add_f32 v{t2}, v{t2}, v{vals[i+1]}")
        it.append(f"v_add_f32 v{sm_}, v{sm_}, v{t2}")
        it += [f"v_mov_b32 v{t2}, v{sm_}", f"v_permlane16_swap_b32 v{sm_}, v{t2}", f"v_add_f32 v{sm_}, v{sm_}, v{t2}",
               f"v_mov_b32 v{t2}, v{sm_}", f"v_permlane32_swap_b32 v{sm_}, v{t2}", f"v_add_f32 v{sm_}, v{sm_}, v{t2}",
               f"v_rcp_f32 v{sm_}, v{sm_}"]
        for v in vals: it.append(f"v_mul_f32 v{v}, v{v}, v{sm_}")
        for i in range(6): it.append(f"v_cvt_pk_bf16_f32 v{PFR + u*8 + i}, v{vals[2*i]}, v{vals[2*i+1]}")
        return it
    def pv(u):
        it = []
        for t in range(8):
            d = AO + (t*3+u)*4
            it.append(f"v_mfma_f32_16x16x32_bf16 {vr(d)}, {vr(VF + t*6)}, {vr(PFR + u*8)}, 0")
        for t in range(8):
            d = AO + (t*3+u)*4
            it.append(f"v_mfma_f32_16x16x16_bf16 {vr(d)}, {vr(VF + t*6 + 4, 2)}, {vr(PFR + u*8 + 4, 2)}, {vr(d)}")
        return it
    def cvto(u):
        it = []
        for T in range(4):
            r0 = AO + ((2*T)*3 + u)*4
            r1 = AO + ((2*T+1)*3 + u)*4
            it += [f"v_cvt_pk_bf16_f32 v{r0}, v{r0}, v{r0+1}", f"v_cvt_pk_bf16_f32 v{r0+1}, v{r0+2}, v{r0+3}",
                   f"v_cvt_pk_bf16_f32 v{r0+2}, v{r1}, v{r1+1}", f"v_cvt_pk_bf16_f32 v{r0+3}, v{r1+2}, v{r1+3}",
                   f"buffer_store_dwordx4 {vr(r0)}, v{V_L16}, s[{SWS}:{SWS+3}], s{24+u} offen offset:{T*1024}{O_ST}"]
        return it
    vreads = [f"ds_read_b64_tr_b16 {vr(VF + t*6 + 2*kp, 2)}, v{V_TV+t} offset:{kp*4096}" for t in range(8) for kp in range(3)]
    run(cvtq(0))
    interleave(p, st(0), cvtq(1), ratio=2)
    interleave(p, st(1), cvtq(2), ratio=2)
    p("s_barrier")
    s0 = sm(0)
    interleave(p, st(2), vreads + s0[:12], ratio=3)
    run(s0[12:])
    interleave(p, pv(0), sm(1), ratio=5)
    interleave(p, pv(1), sm(2) , ratio=5)
    run(cvto(0))
    interleave(p, pv(2), cvto(1), ratio=2)
    run(cvto(2))
    stamp_end(p, 0, 136)
    p("s_endpgm")
    comp = p

    p = Prog()
    p("L_loader_k1:")
    p("s_cmp_ge_u32 s79, 6")
    p("s_cbranch_scc1 L_kv")
    V_DA, V_DB, V_XD, V_PF = 11, 12, 13, 16
    p(f"""
    s_and_b32 s23, s79, 1
    v_lshlrev_b32 v{V_T0}, 1, v{V_G}
    v_xor_b32 v{V_T0}, v{V_T0}, v{V_I16}
    v_lshlrev_b32 v{V_T0}, 4, v{V_T0}
    v_lshl_add_u32 v{V_DA}, v{V_G}, 13, v{V_T0}
    v_xor_b32 v{V_DB}, 0x80, v{V_DA}
    v_lshrrev_b32 v{V_T0}, 3, v{V_LANE}
    v_mul_u32_u24 v{V_T0}, 1280, v{V_T0}
    v_and_b32 v{V_T1}, 7, v{V_LANE}
    v_xor_b32 v{V_T1}, v{V_T1}, v{V_G}
    v_lshl_add_u32 v{V_XD}, v{V_T1}, 4, v{V_T0}
    v_xor_b32 v{V_T1}, 4, v{V_T1}
    v_lshl_add_u32 v{V_XD+1}, v{V_T1}, 4, v{V_T0}
    s_lshl_b32 s24, s16, 8
    s_lshl_b32 s10, s23, 18
    s_add_u32 s24, s24, s10
    s_lshl_b32 s25, s23, 13
    s_lshl_b32 s22, s9, 2
    s_lshl_b32 s10, s23, 1
    s_add_u32 s22, s22, s10
    s_mul_i32 s26, s22, 61440
    s_mul_i32 s77, s23, 49152
    s_add_u32 s77, s77, {LX}
    s_mul_i32 s10, s9, 5
    s_lshr_b32 s10, s10, 1
    s_mul_i32 s11, s8, 5
    s_lshr_b32 s11, s11, 2
    s_add_u32 s72, s10, s11
    s_cmp_ge_u32 s72, 10
    s_cselect_b32 s10, 10, 0
    s_sub_u32 s72, s72, s10
    """)
    if not ROT: p("s_mov_b32 s72, 0")
    def chunk_loads(c):
        if c > 0:
            p("s_add_u32 s72, s72, 1\ns_cmp_ge_u32 s72, 10\ns_cselect_b32 s10, 10, 0\ns_sub_u32 s72, s72, s10")
        p("s_lshl_b32 s73, s72, 19\ns_add_u32 s73, s73, s24\ns_lshl_b32 s74, s72, 7\ns_add_u32 s74, s74, s26")
        for i in range(8):
            p(f"s_add_u32 m0, s25, {(c % NSL)*16384 + i*1024}")
            p(f"s_add_u32 s97, s73, {(4*i) * 8192}")
            p(f"buffer_load_dwordx4 v{V_DA if (i % 4) < 2 else V_DB}, s[{SWQ}:{SWQ+3}], s97 offen{NT_W} lds", tag=f"c{c}")
        for ww in range(2):
            for j in range(6):
                p(f"s_add_u32 m0, s77, {ww*24576 + (c % NSL)*6144 + j*1024}")
                p(f"s_add_u32 s97, s74, {ww*61440 + j * 10240}")
                p(f"buffer_load_dwordx4 v{V_XD + j % 2}, s[{SX}:{SX+3}], s97 offen{NT_X} lds", tag=f"c{c}")
    def pf_wo():
        p(f"""
        s_lshl_b32 s10, s5, 1
        s_add_u32 s10, s10, s23
        s_lshl_b32 s11, s7, 6
        s_add_u32 s10, s10, s11
        s_mul_i32 s75, s10, 20480
        v_lshlrev_b32 v{V_PF}, 7, v{V_LANE}
        v_add_u32 v{V_PF+1}, 8192, v{V_PF}
        v_add_u32 v{V_PF+2}, 16384, v{V_PF}
        v_cmp_lt_u32 vcc, 31, v{V_LANE}
        v_cndmask_b32 v{V_PF+2}, v{V_PF+2}, -1, vcc
        buffer_load_dword v{V_PF+4}, v{V_PF}, s[{SWO}:{SWO+3}], s75 offen{NT_PF}
        buffer_load_dword v{V_PF+5}, v{V_PF+1}, s[{SWO}:{SWO+3}], s75 offen{NT_PF}
        buffer_load_dword v{V_PF+6}, v{V_PF+2}, s[{SWO}:{SWO+3}], s75 offen{NT_PF}
        """)
    p(f"""
    s_lshl_b32 s10, s2, 7
    s_add_u32 s10, s10, {WS_F}
    v_mov_b32 v{V_PF}, 0
    buffer_store_dword v{V_PF}, v{V_PF}, s[{SWS}:{SWS+3}], s10 offen
    """)
    for c in range(DIST): chunk_loads(c)
    for c in range(10):
        p.wait_tag(f"c{c}"); p("s_barrier")
        if c + DIST < 10: chunk_loads(c + DIST)
        if c == PFWO: pf_wo()
    p("s_barrier")
    if PFWO == 10: pf_wo()
    p("s_barrier")
    if PFWO == 11: pf_wo()
    p("s_endpgm")
    load1 = p
    p = Prog()
    p("L_kv:")
    V_VA, V_VB, V_WR, V_KD = 11, 12, 13, 14
    RS = 32
    p(f"""
    s_and_b32 s23, s79, 1
    v_lshlrev_b32 v{V_T0}, 1, v{V_G}
    v_xor_b32 v{V_T0}, v{V_T0}, v{V_I16}
    v_lshlrev_b32 v{V_T0}, 4, v{V_T0}
    v_lshl_add_u32 v{V_VA}, v{V_G}, 8, v{V_T0}
    v_xor_b32 v{V_VB}, 0x80, v{V_VA}
    s_mul_i32 s77, s23, 49152
    s_add_u32 s77, s77, {LX}
    v_add_u32 v{V_WR}, s77, v{V_L16}
    v_xor_b32 v{V_T0}, v{V_G}, v{V_I16}
    v_lshlrev_b32 v{V_T0}, 4, v{V_T0}
    v_lshl_add_u32 v{V_KD}, v{V_G}, 8, v{V_T0}
    v_xor_b32 v{V_KD+1}, 0x40, v{V_KD}
    v_xor_b32 v{V_KD+2}, 0x80, v{V_KD}
    v_xor_b32 v{V_KD+3}, 0xc0, v{V_KD}
    s_lshl_b32 s22, s9, 2
    s_lshl_b32 s10, s23, 1
    s_add_u32 s22, s22, s10
    s_lshl_b32 s10, s22, 5
    s_add_u32 s10, s10, s16
    s_mul_i32 s24, s10, 12288
    s_add_u32 s25, s24, 4096
    s_add_u32 s26, s24, 8192
    s_add_u32 s27, s24, 393216
    s_add_u32 s28, s27, 4096
    s_add_u32 s29, s27, 8192
    """)
    kv = []
    for ww in range(2):
        kv += [f"buffer_load_dwordx4 {vr(RS + ww*96 + i*4)}, v{V_KD + i % 4}, s[{SK}:{SK+3}], s{24 + 3*ww + i//4} offen offset:{(i%4)*1024}{NT_KV}" for i in range(12)]
    for ww in range(2):
        kv += [f"buffer_load_dwordx4 {vr(RS + ww*96 + 48 + i*4)}, v{V_VA if i % 2 == 0 else V_VB}, s[{SV}:{SV+3}], s{24 + 3*ww + i//4} offen offset:{(i%4)*1024}{NT_KV}" for i in range(12)]
    nb = KV_END - KV_START
    per = (len(kv) + nb - 1) // nb
    for c in range(-1, 10):
        if c >= 0: p("s_barrier")
        if c >= KV_START:
            for x in kv[:per]: p(x)
            kv = kv[per:]
    for x in kv: p(x)
    for ww in range(2):
        for i in range(12):
            p(f"ds_write_b128 v{V_WR}, {vr(RS + ww*96 + i*4)} offset:{ww*24576 + 12288 + i*1024}")
    p.wait_lg(0)
    p("s_barrier")
    for ww in range(2):
        for i in range(12):
            p(f"ds_write_b128 v{V_WR}, {vr(RS + ww*96 + 48 + i*4)} offset:{ww*24576 + i*1024}")
    p.wait_lg(0)
    p("s_barrier")
    p("L_end_k1:")
    p("s_endpgm")
    load2 = p
    for q in (hd, comp, load1, load2): q.finalize()
    hd.ins = hd.ins + comp.ins + load1.ins + load2.ins
    return hd

def k2():
    NS = 5
    hd = head("k2")
    p = Prog()
    V_A = 11; V_B = 26; V_OUT = 29
    FR2 = 32; ACC2 = 96; D = 156
    p("""
    s_lshr_b32 s10, s3, 1
    s_and_b32 s11, s3, 1
    """)
    p(f"""
    v_lshl_add_u32 v{V_T0}, v{V_G}, 2, v{V_RR}
    v_mul_u32_u24 v{V_T0}, 320, v{V_T0}
    v_lshl_add_u32 v{V_T0}, v{V_CC}, 3, v{V_T0}
    v_and_b32 v{V_T1}, 1, v{V_G}
    s_mul_i32 s13, s11, 5
    """)
    for tt in range(5):
        p(f"""
        s_add_u32 s12, s13, {tt}
        v_xor_b32 v{V_T2}, s12, v{V_T1}
        v_lshl_add_u32 v{V_A+tt}, v{V_T2}, 5, v{V_T0}
        v_add_u32 v{V_A+5+tt}, 0x10000, v{V_A+tt}
        v_add_u32 v{V_A+10+tt}, 0x20000, v{V_A+tt}
        """)
    p(f"""
    s_mul_i32 s13, s10, 6144
    v_add_u32 v{V_B}, s13, v{V_L16}
    v_add_u32 v{V_B+1}, 0x10000, v{V_B}
    v_add_u32 v{V_B+2}, 0x20000, v{V_B}
    v_mul_u32_u24 v{V_OUT}, 2560, v{V_I16}
    v_lshl_add_u32 v{V_OUT}, v{V_G}, 3, v{V_OUT}
    s_lshl_b32 s13, s6, 3
    s_add_u32 s13, s13, s17
    s_lshl_b32 s13, s13, 2
    s_add_u32 s13, s13, s18
    s_lshl_b32 s13, s13, 4
    s_add_u32 s13, s13, s3
    s_mul_i32 s27, s13, 15360
    s_add_u32 s27, s27, {WS_P}
    s_mul_i32 s12, s7, 61440
    s_add_u32 s28, s27, s12
    s_mul_i32 s13, s17, 96
    s_mul_i32 s12, s10, 48
    s_add_u32 s13, s13, s12
    s_mul_i32 s29, s13, 2560
    s_mul_i32 s13, s6, 1280
    s_add_u32 s29, s29, s13
    s_mul_i32 s13, s18, 320
    s_add_u32 s29, s29, s13
    s_mul_i32 s13, s11, 160
    s_add_u32 s29, s29, s13
    """)
    def run(items):
        for x in items:
            if callable(x): x()
            else: p(x)
    def reads2(s):
        c, ks = s // 2, s % 2
        base = (c % NS) * 32768
        fb = FR2 + (s % 2) * 32
        it = []
        for u in range(3):
            if env("K2_NOB", "0") == "1" and s > 1: break
            off = base + (u*2 + ks) * 1024
            it.append(f"ds_read_b128 {vr(fb + 20 + u*4)}, v{V_B + off // 65536} offset:{off % 65536}")
        for tt in range(5):
            if env("K2_NOA", "0") == "1" and s > 1: break
            for hf in range(2):
                off = base + 12288 + ks*10240 + hf*5120
                it.append(f"ds_read_b64_tr_b16 {vr(fb + tt*4 + 2*hf, 2)}, v{V_A + 5*(off // 65536) + tt} offset:{off % 65536}")
        return it
    def mfmas2(s):
        fb = FR2 + (s % 2) * 32
        it = []
        for tt in range(5):
            for u in range(3):
                a = ACC2 + (tt*3+u)*4
                c = "0" if s == 0 else vr(a)
                it.append(f"v_mfma_f32_16x16x32_bf16 {vr(a)}, {vr(fb + tt*4)}, {vr(fb + 20 + u*4)}, {c}")
        return it
    p("s_barrier")
    stamp(p, 1)
    run(reads2(0))
    for s in range(32):
        if s % 2 == 1 and s < 31: p("s_barrier")
        side = reads2(s + 1) if s < 31 else []
        interleave(p, mfmas2(s), side, ratio=1)
    stamp(p, 2)
    p("s_nop 15")
    for q in range(4):
        p(f"s_cmp_eq_u32 s7, {q}")
        p(f"s_cbranch_scc1 L_skipq{q}")
        p(f"s_add_u32 s30, s28, {q*4096}")
        for i in range(4):
            tile = 4*q + i
            if tile < 15:
                p.raw(f"buffer_store_dwordx4 {vr(ACC2 + tile*4)}, v{V_L16}, s[{SWS}:{SWS+3}], s30 offen offset:{i*1024} sc1")
        p(f"L_skipq{q}:")
    for q in range(4):
        p(f"s_cmp_lg_u32 s7, {q}")
        p(f"s_cbranch_scc1 L_nown{q}")
        for i in range(4):
            tile = min(4*q + i, 14)
            for r in range(4):
                p.raw(f"v_mov_b32 v{FR2 + i*4 + r}, v{ACC2 + tile*4 + r}")
        p(f"L_nown{q}:")
    p("s_waitcnt vmcnt(0)")
    stamp(p, 3)
    p("s_barrier")
    p("s_barrier")
    stamp(p, 4)
    p("s_lshl_b32 s31, s7, 12")
    p("s_add_u32 s31, s31, s27")
    for jj in range(3):
        p(f"s_add_u32 s30, s7, {jj+1}\ns_and_b32 s30, s30, 3\ns_mul_i32 s30, s30, 61440\ns_add_u32 s30, s30, s31")
        for i in range(4):
            p(f"buffer_load_dwordx4 {vr(D + (jj*4+i)*4)}, v{V_L16}, s[{SWS}:{SWS+3}], s30 offen offset:{i*1024} sc1")
    for i in range(4):
        if i == 3:
            p("s_cmp_eq_u32 s7, 3")
            p("s_cbranch_scc1 L_fin")
        p(f"""
        s_lshl_b32 s13, s7, 2
        s_add_u32 s13, s13, {i}
        s_mul_i32 s12, s13, 11
        s_lshr_b32 s12, s12, 5
        s_mul_i32 s11, s12, 3
        s_sub_u32 s13, s13, s11
        s_mul_i32 s13, s13, 40960
        s_lshl_b32 s12, s12, 5
        s_add_u32 s13, s13, s12
        s_add_u32 s30, s29, s13
        """)
        b0 = FR2 + i*4
        b1, b2, b3 = [D + (j*4+i)*4 for j in range(3)]
        for r in range(4):
            p(f"v_add_f32 v{b0+r}, v{b0+r}, v{b1+r}")
            p(f"v_add_f32 v{b2+r}, v{b2+r}, v{b3+r}")
            p(f"v_add_f32 v{b0+r}, v{b0+r}, v{b2+r}")
        p(f"v_cvt_pk_bf16_f32 v{b1}, v{b0}, v{b0+1}")
        p(f"v_cvt_pk_bf16_f32 v{b1+1}, v{b0+2}, v{b0+3}")
        p(f"buffer_store_dwordx2 {vr(b1, 2)}, v{V_OUT}, s[{SOUT}:{SOUT+3}], s30 offen")
    p("L_fin:")
    stamp_end(p, 1, 60)
    p("s_endpgm")
    comp = p
    p = Prog()
    p("L_loader_k2:")
    V_WO = 11; V_FL = 16; V_FD = 18
    p("s_movk_i32 s12, 3277")
    for j in range(5):
        p(f"""
        v_add_u32 v{V_T0}, {64*j}, v{V_LANE}
        v_mul_u32_u24 v{V_T1}, s12, v{V_T0}
        v_lshrrev_b32 v{V_T1}, 16, v{V_T1}
        v_mul_u32_u24 v{V_T2}, 20, v{V_T1}
        v_sub_u32 v{V_T0}, v{V_T0}, v{V_T2}
        v_bfe_u32 v{V_T2}, v{V_T1}, 2, 1
        v_lshlrev_b32 v{V_T2}, 1, v{V_T2}
        v_xor_b32 v{V_T0}, v{V_T0}, v{V_T2}
        v_lshlrev_b32 v{V_T0}, 4, v{V_T0}
        v_mul_u32_u24 v{V_T1}, 1280, v{V_T1}
        v_add_u32 v{V_WO+j}, v{V_T0}, v{V_T1}
        """)
    p(f"""
    s_lshr_b32 s10, s3, 1
    s_and_b32 s11, s3, 1
    s_mul_i32 s13, s6, 48
    s_mul_i32 s12, s17, 6
    s_add_u32 s13, s13, s12
    s_mul_i32 s12, s10, 3
    s_add_u32 s13, s13, s12
    s_lshl_b32 s13, s13, 7
    s_lshl_b32 s12, s7, 5
    s_add_u32 s13, s13, s12
    s_add_u32 s13, s13, s11
    s_lshl_b32 s24, s13, 10
    s_mul_i32 s13, s10, 6
    s_add_u32 s13, s13, s11
    s_lshl_b32 s25, s13, 10
    s_lshl_b32 s13, s7, 10
    s_lshl_b32 s12, s3, 4
    s_add_u32 s13, s13, s12
    s_mul_i32 s13, s13, 1280
    s_mul_i32 s12, s18, 320
    s_add_u32 s26, s13, s12
    s_mul_i32 s13, s3, 5120
    s_add_u32 s27, s13, 12288
    s_lshl_b32 s72, s18, 2
    s_lshl_b32 s13, s17, 1
    s_add_u32 s72, s72, s13
    s_and_b32 s72, s72, 15
    """)
    if not ROT2: p("s_mov_b32 s72, 0")
    p(f"""
    s_lshl_b32 s10, s2, 7
    s_add_u32 s10, s10, {WS_F}
    v_mov_b32 v{V_FL}, s10
    s_and_b32 s10, s2, 0xfc
    s_lshl_b32 s10, s10, 7
    s_add_u32 s10, s10, {WS_F}
    v_and_b32 v{V_T0}, 3, v{V_LANE}
    v_lshlrev_b32 v{V_T0}, 7, v{V_T0}
    v_add_u32 v{V_FL+1}, s10, v{V_T0}
    """)
    def dma(c):
        slot = c % NS
        p(f"s_add_u32 s73, s72, {c}\ns_and_b32 s73, s73, 15")
        p("s_mul_i32 s74, s73, 81920\ns_add_u32 s74, s74, s26")
        p("s_lshl_b32 s73, s73, 11\ns_add_u32 s73, s73, s24")
        for i in range(3):
            p(f"s_add_u32 m0, s25, {slot*32768 + i*2048}")
            p(f"s_add_u32 s97, s73, {WS_O + i*131072}")
            p(f"buffer_load_dwordx4 v{V_L16}, s[{SWS}:{SWS+3}], s97 offen lds", tag=f"c{c}")
        for j in range(5):
            p(f"s_add_u32 m0, s27, {slot*32768 + j*1024}")
            p("s_nop 0")
            p(f"buffer_load_dwordx4 v{V_WO+j}, s[{SWO}:{SWO+3}], s74 offen{NT_WO} lds", tag=f"c{c}")
    nxt = 0
    for c in range(DIST2): dma(c); nxt += 1
    for c in range(16):
        p.wait_tag(f"c{c}"); p("s_barrier")
        if nxt <= min(15, c + DIST2): dma(nxt); nxt += 1
    p("s_cmp_lg_u32 s79, 4")
    p("s_cbranch_scc1 L_end_k2")
    p.raw("s_barrier")
    p.raw(f"v_mov_b32 v{V_FD}, 1")
    p.raw(f"buffer_store_dword v{V_FD}, v{V_FL}, s[{SWS}:{SWS+3}], 0 offen sc1")
    p.raw(f"s_mov_b32 s76, {SPIN_MAX}")
    p.raw("L_poll2:")
    p.raw(f"buffer_load_dword v{V_FD}, v{V_FL+1}, s[{SWS}:{SWS+3}], 0 offen sc1")
    p.raw("s_waitcnt vmcnt(0)")
    p.raw(f"v_cmp_ne_u32 vcc, 1, v{V_FD}")
    p.raw("s_nop 4")
    p.raw("s_cmp_eq_u64 vcc, 0")
    p.raw("s_cbranch_scc1 L_done2")
    p.raw(f"s_sleep {SLEEP}")
    p.raw("s_sub_u32 s76, s76, 1")
    p.raw("s_cmp_lg_u32 s76, 0")
    p.raw("s_cbranch_scc1 L_poll2")
    p.raw("L_done2:")
    p.raw("s_barrier")
    p("L_end_k2:")
    p("s_endpgm")
    p("L_code_end:")
    load = p
    for q in (hd, comp, load): q.finalize()
    hd.ins = hd.ins + comp.ins + load.ins
    return hd

def kd(name, vgpr, sgpr=100):
    return f""".amdhsa_kernel {name}
  .amdhsa_next_free_vgpr {vgpr}
  .amdhsa_next_free_sgpr {sgpr}
  .amdhsa_accum_offset {vgpr}
  .amdhsa_group_segment_fixed_size 0
  .amdhsa_kernarg_size 104
  .amdhsa_user_sgpr_count 2
  .amdhsa_user_sgpr_kernarg_segment_ptr 1
  .amdhsa_system_sgpr_workgroup_id_x 1
.end_amdhsa_kernel
"""
def build(out):
    hdr = open("cdna_kernels/" + NAME + ".s.ref").read().split("; Override launch")[0]
    s = hdr
    s += "; @launch kernel=k1_kernel grid=(256,1,1) block=(512,1,1) lds=163840\n"
    s += "; @launch kernel=k2_kernel grid=(256,1,1) block=(512,1,1) lds=163840\n"
    s += '.amdgcn_target "amdgcn-amd-amdhsa--gfx950"\n.text\n'
    for nm, f in (("k1_kernel", k1), ("k2_kernel", k2)):
        s += f".globl {nm}\n.p2align 8\n.type {nm},@function\n{nm}:\n" + f().text()
    s += '.section .rodata,"a"\n.p2align 6\n'
    s += kd("k1_kernel", 256) + ".p2align 6\n" + kd("k2_kernel", 256)
    open(out, "w").write(s)
if __name__ == "__main__":
    if len(sys.argv) > 2 and sys.argv[2] == "stamp": STAMP = True
    build(sys.argv[1])
```

```python
import sys, math, os, struct
from asmlib import *
NAME = "concat_heads__mha_block_cached__gqa_block_cached__near_ridge"
WS_O = 0
WS_P = 16 << 20
WS_F = 48 << 20
WS_STAMP = 64 << 20
SCALE_LOG2E = (128 ** -0.5) * math.log2(math.e)
def f32bits(x): return struct.unpack('<I', struct.pack('<f', x))[0]
def vr(b, n=4): return f"v[{b}:{b+n-1}]"
def env(k, d): return os.environ.get(k, d)
STAMP = False
ROT = env("ROT", "1") == "1"
ROT2 = env("ROT2", "1") == "1"
POL = {"0": "", "1": " nt", "2": " sc1", "3": " sc0 sc1", "4": " sc0"}
NT_W = POL[env("NT_W", "0")]
NT_X = POL[env("NT_X", "0")]
NT_KV = POL[env("NT_KV", "1")]
NT_WO = " nt" if env("NT_WO", "0") == "1" else ""
NT_PF = " nt" if env("NT_PF", "0") == "1" else ""
O_ST = env("O_ST", " sc0 sc1")
DIST = int(env("DIST", "2"))
DIST2 = int(env("DIST2", "2"))
KV_START = int(env("KV_START", "0"))
KV_END = int(env("KV_END", "8"))
PFWO = int(env("PFWO", "8"))
SLEEP = int(env("SLEEP", "4"))
SPIN_MAX = 200000
NCPF = 2
SX, SK, SV, SWQ, SWS, SWO, SOUT = 40, 44, 48, 52, 56, 60, 64
V_LANE, V_G, V_I16, V_RR, V_CC, V_F, V_T0, V_T1, V_T2, V_L16 = 1, 2, 3, 4, 5, 6, 7, 8, 9, 10

def srd(p, d, lo, hi, size):
    p(f"s_mov_b32 s{d}, s{lo}\ns_mov_b32 s{d+1}, s{hi}\ns_mov_b32 s{d+2}, {size}\ns_mov_b32 s{d+3}, 0x20000")
def srd_sel(p, d, a, b, size):
    p(f"s_cselect_b32 s{d}, s{a}, s{b}\ns_cselect_b32 s{d+1}, s{a+1}, s{b+1}\ns_mov_b32 s{d+2}, {size}\ns_mov_b32 s{d+3}, 0x20000")
def stamp(p, slot):
    if STAMP: p(f"s_memrealtime s[{80+2*slot}:{81+2*slot}]")
def stamp_end(p, kidx, vt):
    if STAMP and env("DBGSTAMP", "0") == "1" and kidx == 1:
        p("s_waitcnt vmcnt(0)")
        stamp(p, 6)
        p("s_waitcnt lgkmcnt(0)")
        p("s_lshl_b32 s96, s2, 2")
        p("s_or_b32 s96, s96, s3")
        p("s_cmp_lg_u32 s96, 308")
        p(f"s_cbranch_scc1 L_nost{kidx}")
        p(f"s_mov_b32 s68, s38\ns_mov_b32 s69, s39\ns_mov_b32 s70, 256\ns_mov_b32 s71, 0x20000")
        p(f"v_mov_b32 v{vt+8}, 0")
        p(f"s_mov_b32 s96, {WS_STAMP + 308*32}")
        p.raw(f"buffer_load_dwordx4 v[{vt+12}:{vt+15}], v{vt+8}, s[{SWS}:{SWS+3}], s96 offen")
        p.raw(f"buffer_load_dwordx4 v[{vt+16}:{vt+19}], v{vt+8}, s[{SWS}:{SWS+3}], s96 offen offset:16")
        for i in range(8):
            p.raw(f"v_mov_b32 v{vt+i}, s{80+2*i}")
        p.raw("s_waitcnt vmcnt(0)")
        p.raw(f"buffer_store_dwordx4 v[{vt+12}:{vt+15}], v{vt+8}, s[68:71], 0 offen")
        p.raw(f"buffer_store_dwordx4 v[{vt+16}:{vt+19}], v{vt+8}, s[68:71], 0 offen offset:16")
        p.raw(f"buffer_store_dwordx4 v[{vt}:{vt+3}], v{vt+8}, s[68:71], 0 offen offset:32")
        p.raw(f"buffer_store_dwordx4 v[{vt+4}:{vt+7}], v{vt+8}, s[68:71], 0 offen offset:48")
        p(f"L_nost{kidx}:")
        return
    if STAMP:
        p("s_waitcnt vmcnt(0)")
        stamp(p, 6)
        p("s_waitcnt lgkmcnt(0)")
        p(f"s_lshl_b32 s96, s2, 2\ns_add_u32 s96, s96, s3\ns_lshl_b32 s96, s96, 5\ns_add_u32 s96, s96, {WS_STAMP + kidx*65536}")
        for i in range(8): p(f"v_mov_b32 v{vt+i}, s{80+2*i}")
        p(f"""
        v_mov_b32 v{vt+8}, 0
        buffer_store_dwordx4 v[{vt}:{vt+3}], v{vt+8}, s[{SWS}:{SWS+3}], s96 offen
        buffer_store_dwordx4 v[{vt+4}:{vt+7}], v{vt+8}, s[{SWS}:{SWS+3}], s96 offen offset:16
        """)

def head(tag):
    p = Prog()
    p("s_cmp_ge_u32 s2, 256")
    p(f"s_cbranch_scc1 L_end_{tag}")
    if STAMP:
        for i in range(80, 96): p(f"s_mov_b32 s{i}, 0")
    stamp(p, 0)
    p("""
    s_load_dwordx16 s[16:31], s[0:1], 0
    s_load_dwordx8 s[32:39], s[0:1], 64
    s_load_dwordx2 s[14:15], s[0:1], 96
    """)
    p(f"""
    v_and_b32 v{V_LANE}, 63, v0
    v_lshrrev_b32 v{V_T0}, 6, v0
    v_lshrrev_b32 v{V_G}, 4, v{V_LANE}
    v_readfirstlane_b32 s79, v{V_T0}
    v_and_b32 v{V_I16}, 15, v0
    v_bfe_u32 v{V_RR}, v0, 2, 2
    v_and_b32 v{V_CC}, 3, v0
    v_lshlrev_b32 v{V_L16}, 4, v{V_LANE}
    s_and_b32 s3, s79, 3
    s_and_b32 s4, s2, 7
    s_lshr_b32 s5, s2, 3
    s_lshr_b32 s6, s4, 2
    s_and_b32 s7, s4, 3
    s_lshr_b32 s8, s5, 2
    s_and_b32 s9, s5, 3
    """)
    p("s_waitcnt lgkmcnt(0)")
    p("s_cmp_eq_u32 s6, 0")
    if tag == "k1":
        srd_sel(p, SX, 16, 26, 983040)
        srd_sel(p, SK, 18, 28, 6291456)
        srd_sel(p, SV, 20, 30, 6291456)
        srd_sel(p, SWQ, 22, 32, 5242880)
    srd_sel(p, SWO, 24, 34, 5242880)
    srd(p, SWS, 14, 15, 0x10000000)
    if tag == "k2": srd(p, SOUT, 36, 37, 16*48*1280*2)
    p("""
    s_lshl_b32 s16, s7, 3
    s_add_u32 s16, s16, s8
    s_lshl_b32 s17, s9, 1
    s_lshr_b32 s10, s8, 2
    s_add_u32 s17, s17, s10
    s_and_b32 s18, s8, 3
    """)
    p("s_cmp_ge_u32 s79, 4")
    p(f"s_cbranch_scc1 L_loader_{tag}")
    return p

def k1():
    NSL = 4
    LX = 65536
    hd = head("k1")
    p = Prog()
    V_XR = 11; V_TR = 13; V_TV = 21; V_KR = 29
    T3 = 37
    FR = 40; ACC = 136; TMP = 232
    if env("CODEPF", "1") == "1":
        p("s_getpc_b64 s[30:31]")
        p("L_pc0:")
        p("s_mov_b32 s10, (L_code_end - L_pc0 - 4)")
        p(f"v_lshlrev_b32 v{TMP}, 7, v{V_LANE}")
        p(f"s_lshl_b32 s11, s3, 13")
        p(f"v_add_u32 v{TMP}, s11, v{TMP}")
        for i in range(NCPF):
            p(f"v_add_u32 v{TMP+1}, {i*32768}, v{TMP}")
            p(f"v_min_u32 v{TMP+1}, s10, v{TMP+1}")
            p(f"global_load_dword v{TMP+2+i}, v{TMP+1}, s[30:31]")
    p(f"""
    s_mul_i32 s10, s3, 24576
    s_add_u32 s77, s10, {LX}
    s_lshl_b32 s22, s9, 2
    s_add_u32 s22, s22, s3
    v_and_b32 v{V_T0}, 1, v{V_G}
    v_lshlrev_b32 v{V_T0}, 2, v{V_T0}
    v_or_b32 v{V_F}, v{V_RR}, v{V_T0}
    v_lshrrev_b32 v{V_T0}, 1, v{V_I16}
    v_xor_b32 v{V_T0}, v{V_T0}, v{V_G}
    v_lshlrev_b32 v{V_T1}, 7, v{V_I16}
    v_add_u32 v{V_T1}, s77, v{V_T1}
    v_lshl_add_u32 v{V_XR}, v{V_T0}, 4, v{V_T1}
    v_xor_b32 v{V_T0}, 4, v{V_T0}
    v_lshl_add_u32 v{V_XR+1}, v{V_T0}, 4, v{V_T1}
    v_lshl_add_u32 v{V_T0}, v{V_G}, 3, v{V_RR}
    v_lshlrev_b32 v{V_T0}, 8, v{V_T0}
    v_lshl_add_u32 v{V_T0}, v{V_CC}, 3, v{V_T0}
    v_lshl_add_u32 v{V_T1}, v{V_G}, 2, v{V_RR}
    v_lshlrev_b32 v{V_T1}, 8, v{V_T1}
    v_lshl_add_u32 v{V_T1}, v{V_CC}, 3, v{V_T1}
    v_add_u32 v{V_T1}, s77, v{V_T1}
    """)
    for t in range(8):
        p(f"""
        v_xor_b32 v{TMP}, {t}, v{V_F}
        v_lshl_add_u32 v{V_TR+t}, v{TMP}, 5, v{V_T0}
        v_lshl_add_u32 v{V_TV+t}, v{TMP}, 5, v{V_T1}
        """)
    p(f"""
    v_lshrrev_b32 v{V_T0}, 1, v{V_G}
    v_xor_b32 v{V_T0}, v{V_T0}, v{V_I16}
    v_and_b32 v{V_T1}, 1, v{V_G}
    v_lshlrev_b32 v{V_T1}, 3, v{V_T1}
    v_lshl_add_u32 v{V_T1}, v{V_I16}, 8, v{V_T1}
    v_add_u32 v{V_T1}, s77, v{V_T1}
    """)
    for j in range(8):
        p(f"""
        v_xor_b32 v{TMP}, {2*j}, v{V_T0}
        v_lshl_add_u32 v{V_KR+j}, v{TMP}, 4, v{V_T1}
        """)
    p(f"""
    s_mul_i32 s10, s6, 48
    s_mul_i32 s11, s22, 3
    s_add_u32 s10, s10, s11
    s_lshl_b32 s10, s10, 7
    s_lshl_b32 s11, s16, 2
    s_add_u32 s10, s10, s11
    s_lshl_b32 s24, s10, 10
    s_add_u32 s25, s24, 131072
    s_add_u32 s26, s24, 262144
    s_mov_b32 s98, {f32bits(SCALE_LOG2E)}
    """)
    def run(items):
        for x in items:
            if callable(x): x()
            else: p(x)
    def reads(s):
        c, ks = s // 2, s % 2
        it = []
        fb = FR + (s % 2) * 44
        for u in range(3):
            it.append(f"ds_read_b128 {vr(fb + 32 + u*4)}, v{V_XR + ks} offset:{(c % NSL)*6144 + u*2048}")
        off0 = (c % NSL) * 16384 + ks * 8192
        for t in range(8):
            for hf in range(2):
                it.append(f"ds_read_b64_tr_b16 {vr(fb + t*4 + 2*hf, 2)}, v{V_TR+t} offset:{off0 + hf*1024}")
        return it
    def mfmas(s, order_u=False):
        it = []
        fb = FR + (s % 2) * 44
        idx = [(t, u) for u in range(3) for t in range(8)] if order_u else [(t, u) for t in range(8) for u in range(3)]
        for t, u in idx:
            a = ACC + (t*3+u)*4
            c = "0" if s == 0 else vr(a)
            it.append(f"v_mfma_f32_16x16x32_bf16 {vr(a)}, {vr(fb + t*4)}, {vr(fb + 32 + u*4)}, {c}")
        return it
    def KF(i): return 40 + 4*i if i < 11 else 128
    def QF(i): return 84 + 4*i if i < 11 else 132
    kreads = [f"ds_read_b64 {vr(KF(kt*4+T) + 2*hf, 2)}, v{V_KR + 2*T + hf} offset:{12288 + kt*4096}" for kt in range(3) for T in range(4) for hf in range(2)]
    p("s_barrier")
    stamp(p, 1)
    run(reads(0))
    for s in range(20):
        if s % 2 == 1:
            p.wait_lg(0)
            p("s_barrier")
        side = reads(s + 1) if s < 19 else []
        interleave(p, mfmas(s, order_u=(s == 19)), side, ratio=1)
    stamp(p, 2)
    ST = ACC
    VF = ACC + 40
    PFR = TMP
    AO = 40
    def cvtq(u):
        it = []
        for T in range(4):
            for k in range(4):
                a = ACC + ((2*T + k//2)*3 + u)*4 + 2*(k%2)
                it.append(f"v_cvt_pk_bf16_f32 v{QF(T*3+u) + k}, v{a}, v{a+1}")
        return it
    def st(u):
        it = []
        for T in range(4):
            for kt in range(3):
                d = ST + (kt*3+u)*4
                c = "0" if T == 0 else vr(d)
                it.append(f"v_mfma_f32_16x16x32_bf16 {vr(d)}, {vr(KF(kt*4+T))}, {vr(QF(T*3+u))}, {c}")
        return it
    def sm(u):
        it = []
        vals = [ST + (kt*3+u)*4 + r for kt in range(3) for r in range(4)]
        m, t2, sm_ = T3, T3+1, T3+2
        it.append(f"v_max3_f32 v{m}, v{vals[0]}, v{vals[1]}, v{vals[2]}")
        it.append(f"v_max3_f32 v{t2}, v{vals[3]}, v{vals[4]}, v{vals[5]}")
        it.append(f"v_max3_f32 v{m}, v{m}, v{vals[6]}, v{vals[7]}")
        it.append(f"v_max3_f32 v{t2}, v{t2}, v{vals[8]}, v{vals[9]}")
        it.append(f"v_max3_f32 v{m}, v{m}, v{vals[10]}, v{vals[11]}")
        it.append(f"v_max_f32 v{m}, v{m}, v{t2}")
        it += [f"v_mov_b32 v{t2}, v{m}", f"v_permlane16_swap_b32 v{m}, v{t2}", f"v_max_f32 v{m}, v{m}, v{t2}",
               f"v_mov_b32 v{t2}, v{m}", f"v_permlane32_swap_b32 v{m}, v{t2}", f"v_max_f32 v{m}, v{m}, v{t2}",
               f"v_mul_f32 v{m}, s98, v{m}"]
        for v in vals: it.append(f"v_fma_f32 v{v}, v{v}, s98, -v{m}")
        for v in vals: it.append(f"v_exp_f32 v{v}, v{v}")
        it.append(f"v_add_f32 v{sm_}, v{vals[0]}, v{vals[1]}")
        it.append(f"v_add_f32 v{t2}, v{vals[2]}, v{vals[3]}")
        for i in range(4, 12, 2):
            it.append(f"v_add_f32 v{sm_}, v{sm_}, v{vals[i]}")
            it.append(f"v_add_f32 v{t2}, v{t2}, v{vals[i+1]}")
        it.append(f"v_add_f32 v{sm_}, v{sm_}, v{t2}")
        it += [f"v_mov_b32 v{t2}, v{sm_}", f"v_permlane16_swap_b32 v{sm_}, v{t2}", f"v_add_f32 v{sm_}, v{sm_}, v{t2}",
               f"v_mov_b32 v{t2}, v{sm_}", f"v_permlane32_swap_b32 v{sm_}, v{t2}", f"v_add_f32 v{sm_}, v{sm_}, v{t2}",
               f"v_rcp_f32 v{sm_}, v{sm_}"]
        for v in vals: it.append(f"v_mul_f32 v{v}, v{v}, v{sm_}")
        for i in range(6): it.append(f"v_cvt_pk_bf16_f32 v{PFR + u*8 + i}, v{vals[2*i]}, v{vals[2*i+1]}")
        return it
    def pv(u):
        it = []
        for t in range(8):
            d = AO + (t*3+u)*4
            it.append(f"v_mfma_f32_16x16x32_bf16 {vr(d)}, {vr(VF + t*6)}, {vr(PFR + u*8)}, 0")
        for t in range(8):
            d = AO + (t*3+u)*4
            it.append(f"v_mfma_f32_16x16x16_bf16 {vr(d)}, {vr(VF + t*6 + 4, 2)}, {vr(PFR + u*8 + 4, 2)}, {vr(d)}")
        return it
    def cvto(u):
        it = []
        for T in range(4):
            r0 = AO + ((2*T)*3 + u)*4
            r1 = AO + ((2*T+1)*3 + u)*4
            it += [f"v_cvt_pk_bf16_f32 v{r0}, v{r0}, v{r0+1}", f"v_cvt_pk_bf16_f32 v{r0+1}, v{r0+2}, v{r0+3}",
                   f"v_cvt_pk_bf16_f32 v{r0+2}, v{r1}, v{r1+1}", f"v_cvt_pk_bf16_f32 v{r0+3}, v{r1+2}, v{r1+3}",
                   f"buffer_store_dwordx4 {vr(r0)}, v{V_L16}, s[{SWS}:{SWS+3}], s{24+u} offen offset:{T*1024}{O_ST}"]
        return it
    vreads = [f"ds_read_b64_tr_b16 {vr(VF + t*6 + 2*kp, 2)}, v{V_TV+t} offset:{kp*4096}" for t in range(8) for kp in range(3)]
    run(cvtq(0))
    p("s_barrier")
    stamp(p, 3)
    interleave(p, kreads, cvtq(1) + cvtq(2), ratio=2)
    run(st(0))
    s0 = sm(0)
    interleave(p, st(1) + st(2), s0, ratio=3, start=2)
    p("s_barrier")
    stamp(p, 4)
    s1 = sm(1)
    interleave(p, vreads, s1[:24], ratio=1)
    interleave(p, pv(0), s1[24:], ratio=4)
    interleave(p, pv(1), sm(2) , ratio=5)
    run(cvto(0))
    interleave(p, pv(2), cvto(1), ratio=2)
    run(cvto(2))
    stamp_end(p, 0, 136)
    p("s_endpgm")
    comp = p

    p = Prog()
    p("L_loader_k1:")
    p("s_cmp_ge_u32 s79, 6")
    p("s_cbranch_scc1 L_kv")
    V_DA, V_DB, V_XD, V_PF = 11, 12, 13, 16
    p(f"""
    s_and_b32 s23, s79, 1
    v_lshlrev_b32 v{V_T0}, 1, v{V_G}
    v_xor_b32 v{V_T0}, v{V_T0}, v{V_I16}
    v_lshlrev_b32 v{V_T0}, 4, v{V_T0}
    v_lshl_add_u32 v{V_DA}, v{V_G}, 13, v{V_T0}
    v_xor_b32 v{V_DB}, 0x80, v{V_DA}
    v_lshrrev_b32 v{V_T0}, 3, v{V_LANE}
    v_mul_u32_u24 v{V_T0}, 1280, v{V_T0}
    v_and_b32 v{V_T1}, 7, v{V_LANE}
    v_xor_b32 v{V_T1}, v{V_T1}, v{V_G}
    v_lshl_add_u32 v{V_XD}, v{V_T1}, 4, v{V_T0}
    v_xor_b32 v{V_T1}, 4, v{V_T1}
    v_lshl_add_u32 v{V_XD+1}, v{V_T1}, 4, v{V_T0}
    s_lshl_b32 s24, s16, 8
    s_lshl_b32 s10, s23, 18
    s_add_u32 s24, s24, s10
    s_lshl_b32 s25, s23, 13
    s_lshl_b32 s22, s9, 2
    s_lshl_b32 s10, s23, 1
    s_add_u32 s22, s22, s10
    s_mul_i32 s26, s22, 61440
    s_mul_i32 s77, s23, 49152
    s_add_u32 s77, s77, {LX}
    s_mul_i32 s10, s9, 5
    s_lshr_b32 s10, s10, 1
    s_mul_i32 s11, s8, 5
    s_lshr_b32 s11, s11, 2
    s_add_u32 s72, s10, s11
    s_cmp_ge_u32 s72, 10
    s_cselect_b32 s10, 10, 0
    s_sub_u32 s72, s72, s10
    """)
    if not ROT: p("s_mov_b32 s72, 0")
    def chunk_loads(c):
        if c > 0:
            p("s_add_u32 s72, s72, 1\ns_cmp_ge_u32 s72, 10\ns_cselect_b32 s10, 10, 0\ns_sub_u32 s72, s72, s10")
        p("s_lshl_b32 s73, s72, 19\ns_add_u32 s73, s73, s24\ns_lshl_b32 s74, s72, 7\ns_add_u32 s74, s74, s26")
        for i in range(8):
            p(f"s_add_u32 m0, s25, {(c % NSL)*16384 + i*1024}")
            p(f"s_add_u32 s97, s73, {(4*i) * 8192}")
            p(f"buffer_load_dwordx4 v{V_DA if (i % 4) < 2 else V_DB}, s[{SWQ}:{SWQ+3}], s97 offen{NT_W} lds", tag=f"c{c}")
        for ww in range(2):
            for j in range(6):
                p(f"s_add_u32 m0, s77, {ww*24576 + (c % NSL)*6144 + j*1024}")
                p(f"s_add_u32 s97, s74, {ww*61440 + j * 10240}")
                p(f"buffer_load_dwordx4 v{V_XD + j % 2}, s[{SX}:{SX+3}], s97 offen{NT_X} lds", tag=f"c{c}")
    def pf_wo():
        p(f"""
        s_lshl_b32 s10, s5, 1
        s_add_u32 s10, s10, s23
        s_lshl_b32 s11, s7, 6
        s_add_u32 s10, s10, s11
        s_mul_i32 s75, s10, 20480
        v_lshlrev_b32 v{V_PF}, 7, v{V_LANE}
        v_add_u32 v{V_PF+1}, 8192, v{V_PF}
        v_add_u32 v{V_PF+2}, 16384, v{V_PF}
        v_cmp_lt_u32 vcc, 31, v{V_LANE}
        v_cndmask_b32 v{V_PF+2}, v{V_PF+2}, -1, vcc
        buffer_load_dword v{V_PF+4}, v{V_PF}, s[{SWO}:{SWO+3}], s75 offen{NT_PF}
        buffer_load_dword v{V_PF+5}, v{V_PF+1}, s[{SWO}:{SWO+3}], s75 offen{NT_PF}
        buffer_load_dword v{V_PF+6}, v{V_PF+2}, s[{SWO}:{SWO+3}], s75 offen{NT_PF}
        """)
    p(f"""
    s_lshl_b32 s10, s2, 7
    s_add_u32 s10, s10, {WS_F}
    v_mov_b32 v{V_PF}, 0
    buffer_store_dword v{V_PF}, v{V_PF}, s[{SWS}:{SWS+3}], s10 offen
    """)
    for c in range(DIST): chunk_loads(c)
    for c in range(10):
        p.wait_tag(f"c{c}"); p("s_barrier")
        if c + DIST < 10: chunk_loads(c + DIST)
        if c == PFWO: pf_wo()
    p("s_barrier")
    if PFWO == 10: pf_wo()
    p("s_endpgm")
    load1 = p
    p = Prog()
    p("L_kv:")
    V_VA, V_VB, V_WR, V_KD = 11, 12, 13, 14
    RS = 32
    p(f"""
    s_and_b32 s23, s79, 1
    v_lshlrev_b32 v{V_T0}, 1, v{V_G}
    v_xor_b32 v{V_T0}, v{V_T0}, v{V_I16}
    v_lshlrev_b32 v{V_T0}, 4, v{V_T0}
    v_lshl_add_u32 v{V_VA}, v{V_G}, 8, v{V_T0}
    v_xor_b32 v{V_VB}, 0x80, v{V_VA}
    s_mul_i32 s77, s23, 49152
    s_add_u32 s77, s77, {LX}
    v_add_u32 v{V_WR}, s77, v{V_L16}
    v_xor_b32 v{V_T0}, v{V_G}, v{V_I16}
    v_lshlrev_b32 v{V_T0}, 4, v{V_T0}
    v_lshl_add_u32 v{V_KD}, v{V_G}, 8, v{V_T0}
    v_xor_b32 v{V_KD+1}, 0x40, v{V_KD}
    v_xor_b32 v{V_KD+2}, 0x80, v{V_KD}
    v_xor_b32 v{V_KD+3}, 0xc0, v{V_KD}
    s_lshl_b32 s22, s9, 2
    s_lshl_b32 s10, s23, 1
    s_add_u32 s22, s22, s10
    s_lshl_b32 s10, s22, 5
    s_add_u32 s10, s10, s16
    s_mul_i32 s24, s10, 12288
    s_add_u32 s25, s24, 4096
    s_add_u32 s26, s24, 8192
    s_add_u32 s27, s24, 393216
    s_add_u32 s28, s27, 4096
    s_add_u32 s29, s27, 8192
    """)
    kv = []
    for ww in range(2):
        kv += [f"buffer_load_dwordx4 {vr(RS + ww*96 + i*4)}, v{V_KD + i % 4}, s[{SK}:{SK+3}], s{24 + 3*ww + i//4} offen offset:{(i%4)*1024}{NT_KV}" for i in range(12)]
    for ww in range(2):
        kv += [f"buffer_load_dwordx4 {vr(RS + ww*96 + 48 + i*4)}, v{V_VA if i % 2 == 0 else V_VB}, s[{SV}:{SV+3}], s{24 + 3*ww + i//4} offen offset:{(i%4)*1024}{NT_KV}" for i in range(12)]
    nb = KV_END - KV_START
    per = (len(kv) + nb - 1) // nb
    for c in range(-1, 11):
        if c >= 0: p("s_barrier")
        if c >= KV_START:
            for x in kv[:per]: p(x)
            kv = kv[per:]
    for x in kv: p(x)
    for ww in range(2):
        for i in range(12):
            p(f"ds_write_b128 v{V_WR}, {vr(RS + ww*96 + i*4)} offset:{ww*24576 + 12288 + i*1024}")
    p.wait_lg(0)
    p("s_barrier")
    for ww in range(2):
        for i in range(12):
            p(f"ds_write_b128 v{V_WR}, {vr(RS + ww*96 + 48 + i*4)} offset:{ww*24576 + i*1024}")
    p.wait_lg(0)
    p("s_barrier")
    p("L_end_k1:")
    p("s_endpgm")
    load2 = p
    for q in (hd, comp, load1, load2): q.finalize()
    hd.ins = hd.ins + comp.ins + load1.ins + load2.ins
    return hd

def k2():
    NS = 5
    hd = head("k2")
    p = Prog()
    V_A = 11; V_B = 26; V_OUT = 29
    FR2 = 32; ACC2 = 96; D = 156
    p("""
    s_lshr_b32 s10, s3, 1
    s_and_b32 s11, s3, 1
    """)
    p(f"""
    v_lshl_add_u32 v{V_T0}, v{V_G}, 2, v{V_RR}
    v_mul_u32_u24 v{V_T0}, 320, v{V_T0}
    v_lshl_add_u32 v{V_T0}, v{V_CC}, 3, v{V_T0}
    v_and_b32 v{V_T1}, 1, v{V_G}
    s_mul_i32 s13, s11, 5
    """)
    for tt in range(5):
        p(f"""
        s_add_u32 s12, s13, {tt}
        v_xor_b32 v{V_T2}, s12, v{V_T1}
        v_lshl_add_u32 v{V_A+tt}, v{V_T2}, 5, v{V_T0}
        v_add_u32 v{V_A+5+tt}, 0x10000, v{V_A+tt}
        v_add_u32 v{V_A+10+tt}, 0x20000, v{V_A+tt}
        """)
    p(f"""
    s_mul_i32 s13, s10, 6144
    v_add_u32 v{V_B}, s13, v{V_L16}
    v_add_u32 v{V_B+1}, 0x10000, v{V_B}
    v_add_u32 v{V_B+2}, 0x20000, v{V_B}
    v_mul_u32_u24 v{V_OUT}, 2560, v{V_I16}
    v_lshl_add_u32 v{V_OUT}, v{V_G}, 3, v{V_OUT}
    s_lshl_b32 s13, s6, 3
    s_add_u32 s13, s13, s17
    s_lshl_b32 s13, s13, 2
    s_add_u32 s13, s13, s18
    s_lshl_b32 s13, s13, 4
    s_add_u32 s13, s13, s3
    s_mul_i32 s27, s13, 15360
    s_add_u32 s27, s27, {WS_P}
    s_mul_i32 s12, s7, 61440
    s_add_u32 s28, s27, s12
    s_mul_i32 s13, s17, 96
    s_mul_i32 s12, s10, 48
    s_add_u32 s13, s13, s12
    s_mul_i32 s29, s13, 2560
    s_mul_i32 s13, s6, 1280
    s_add_u32 s29, s29, s13
    s_mul_i32 s13, s18, 320
    s_add_u32 s29, s29, s13
    s_mul_i32 s13, s11, 160
    s_add_u32 s29, s29, s13
    """)
    def run(items):
        for x in items:
            if callable(x): x()
            else: p(x)
    def reads2(s):
        c, ks = s // 2, s % 2
        base = (c % NS) * 32768
        fb = FR2 + (s % 2) * 32
        it = []
        for u in range(3):
            if env("K2_NOB", "0") == "1" and s > 1: break
            off = base + (u*2 + ks) * 1024
            it.append(f"ds_read_b128 {vr(fb + 20 + u*4)}, v{V_B + off // 65536} offset:{off % 65536}")
        for tt in range(5):
            if env("K2_NOA", "0") == "1" and s > 1: break
            for hf in range(2):
                off = base + 12288 + ks*10240 + hf*5120
                it.append(f"ds_read_b64_tr_b16 {vr(fb + tt*4 + 2*hf, 2)}, v{V_A + 5*(off // 65536) + tt} offset:{off % 65536}")
        return it
    def mfmas2(s):
        fb = FR2 + (s % 2) * 32
        it = []
        for tt in range(5):
            for u in range(3):
                a = ACC2 + (tt*3+u)*4
                c = "0" if s == 0 else vr(a)
                it.append(f"v_mfma_f32_16x16x32_bf16 {vr(a)}, {vr(fb + tt*4)}, {vr(fb + 20 + u*4)}, {c}")
        return it
    p("s_barrier")
    stamp(p, 1)
    run(reads2(0))
    for s in range(32):
        if s % 2 == 1 and s < 31: p("s_barrier")
        side = reads2(s + 1) if s < 31 else []
        interleave(p, mfmas2(s), side, ratio=1)
    stamp(p, 2)
    p("s_nop 15")
    for q in range(4):
        p(f"s_cmp_eq_u32 s7, {q}")
        p(f"s_cbranch_scc1 L_skipq{q}")
        p(f"s_add_u32 s30, s28, {q*4096}")
        for i in range(4):
            tile = 4*q + i
            if tile < 15:
                p.raw(f"buffer_store_dwordx4 {vr(ACC2 + tile*4)}, v{V_L16}, s[{SWS}:{SWS+3}], s30 offen offset:{i*1024} sc1")
        p(f"L_skipq{q}:")
    for q in range(4):
        p(f"s_cmp_lg_u32 s7, {q}")
        p(f"s_cbranch_scc1 L_nown{q}")
        for i in range(4):
            tile = min(4*q + i, 14)
            for r in range(4):
                p.raw(f"v_mov_b32 v{FR2 + i*4 + r}, v{ACC2 + tile*4 + r}")
        p(f"L_nown{q}:")
    p("s_waitcnt vmcnt(0)")
    stamp(p, 3)
    p("s_barrier")
    p("s_barrier")
    stamp(p, 4)
    p("s_lshl_b32 s31, s7, 12")
    p("s_add_u32 s31, s31, s27")
    for jj in range(3):
        p(f"s_add_u32 s30, s7, {jj+1}\ns_and_b32 s30, s30, 3\ns_mul_i32 s30, s30, 61440\ns_add_u32 s30, s30, s31")
        for i in range(4):
            p(f"buffer_load_dwordx4 {vr(D + (jj*4+i)*4)}, v{V_L16}, s[{SWS}:{SWS+3}], s30 offen offset:{i*1024} sc1")
    for i in range(4):
        if i == 3:
            p("s_cmp_eq_u32 s7, 3")
            p("s_cbranch_scc1 L_fin")
        p(f"""
        s_lshl_b32 s13, s7, 2
        s_add_u32 s13, s13, {i}
        s_mul_i32 s12, s13, 11
        s_lshr_b32 s12, s12, 5
        s_mul_i32 s11, s12, 3
        s_sub_u32 s13, s13, s11
        s_mul_i32 s13, s13, 40960
        s_lshl_b32 s12, s12, 5
        s_add_u32 s13, s13, s12
        s_add_u32 s30, s29, s13
        """)
        b0 = FR2 + i*4
        b1, b2, b3 = [D + (j*4+i)*4 for j in range(3)]
        for r in range(4):
            p(f"v_add_f32 v{b0+r}, v{b0+r}, v{b1+r}")
            p(f"v_add_f32 v{b2+r}, v{b2+r}, v{b3+r}")
            p(f"v_add_f32 v{b0+r}, v{b0+r}, v{b2+r}")
        p(f"v_cvt_pk_bf16_f32 v{b1}, v{b0}, v{b0+1}")
        p(f"v_cvt_pk_bf16_f32 v{b1+1}, v{b0+2}, v{b0+3}")
        p(f"buffer_store_dwordx2 {vr(b1, 2)}, v{V_OUT}, s[{SOUT}:{SOUT+3}], s30 offen")
    p("L_fin:")
    stamp_end(p, 1, 60)
    p("s_endpgm")
    comp = p
    p = Prog()
    p("L_loader_k2:")
    V_WO = 11; V_FL = 16; V_FD = 18
    p("s_movk_i32 s12, 3277")
    for j in range(5):
        p(f"""
        v_add_u32 v{V_T0}, {64*j}, v{V_LANE}
        v_mul_u32_u24 v{V_T1}, s12, v{V_T0}
        v_lshrrev_b32 v{V_T1}, 16, v{V_T1}
        v_mul_u32_u24 v{V_T2}, 20, v{V_T1}
        v_sub_u32 v{V_T0}, v{V_T0}, v{V_T2}
        v_bfe_u32 v{V_T2}, v{V_T1}, 2, 1
        v_lshlrev_b32 v{V_T2}, 1, v{V_T2}
        v_xor_b32 v{V_T0}, v{V_T0}, v{V_T2}
        v_lshlrev_b32 v{V_T0}, 4, v{V_T0}
        v_mul_u32_u24 v{V_T1}, 1280, v{V_T1}
        v_add_u32 v{V_WO+j}, v{V_T0}, v{V_T1}
        """)
    p(f"""
    s_lshr_b32 s10, s3, 1
    s_and_b32 s11, s3, 1
    s_mul_i32 s13, s6, 48
    s_mul_i32 s12, s17, 6
    s_add_u32 s13, s13, s12
    s_mul_i32 s12, s10, 3
    s_add_u32 s13, s13, s12
    s_lshl_b32 s13, s13, 7
    s_lshl_b32 s12, s7, 5
    s_add_u32 s13, s13, s12
    s_add_u32 s13, s13, s11
    s_lshl_b32 s24, s13, 10
    s_mul_i32 s13, s10, 6
    s_add_u32 s13, s13, s11
    s_lshl_b32 s25, s13, 10
    s_lshl_b32 s13, s7, 10
    s_lshl_b32 s12, s3, 4
    s_add_u32 s13, s13, s12
    s_mul_i32 s13, s13, 1280
    s_mul_i32 s12, s18, 320
    s_add_u32 s26, s13, s12
    s_mul_i32 s13, s3, 5120
    s_add_u32 s27, s13, 12288
    s_lshl_b32 s72, s18, 2
    s_lshl_b32 s13, s17, 1
    s_add_u32 s72, s72, s13
    s_and_b32 s72, s72, 15
    """)
    if not ROT2: p("s_mov_b32 s72, 0")
    p(f"""
    s_lshl_b32 s10, s2, 7
    s_add_u32 s10, s10, {WS_F}
    v_mov_b32 v{V_FL}, s10
    s_and_b32 s10, s2, 0xfc
    s_lshl_b32 s10, s10, 7
    s_add_u32 s10, s10, {WS_F}
    v_and_b32 v{V_T0}, 3, v{V_LANE}
    v_lshlrev_b32 v{V_T0}, 7, v{V_T0}
    v_add_u32 v{V_FL+1}, s10, v{V_T0}
    """)
    def dma(c):
        slot = c % NS
        p(f"s_add_u32 s73, s72, {c}\ns_and_b32 s73, s73, 15")
        p("s_mul_i32 s74, s73, 81920\ns_add_u32 s74, s74, s26")
        p("s_lshl_b32 s73, s73, 11\ns_add_u32 s73, s73, s24")
        for i in range(3):
            p(f"s_add_u32 m0, s25, {slot*32768 + i*2048}")
            p(f"s_add_u32 s97, s73, {WS_O + i*131072}")
            p(f"buffer_load_dwordx4 v{V_L16}, s[{SWS}:{SWS+3}], s97 offen lds", tag=f"c{c}")
        for j in range(5):
            p(f"s_add_u32 m0, s27, {slot*32768 + j*1024}")
            p("s_nop 0")
            p(f"buffer_load_dwordx4 v{V_WO+j}, s[{SWO}:{SWO+3}], s74 offen{NT_WO} lds", tag=f"c{c}")
    nxt = 0
    for c in range(DIST2): dma(c); nxt += 1
    for c in range(16):
        p.wait_tag(f"c{c}"); p("s_barrier")
        if nxt <= min(15, c + DIST2): dma(nxt); nxt += 1
    p("s_cmp_lg_u32 s79, 4")
    p("s_cbranch_scc1 L_end_k2")
    p.raw("s_barrier")
    p.raw(f"v_mov_b32 v{V_FD}, 1")
    p.raw(f"buffer_store_dword v{V_FD}, v{V_FL}, s[{SWS}:{SWS+3}], 0 offen sc1")
    p.raw(f"s_mov_b32 s76, {SPIN_MAX}")
    p.raw("L_poll2:")
    p.raw(f"buffer_load_dword v{V_FD}, v{V_FL+1}, s[{SWS}:{SWS+3}], 0 offen sc1")
    p.raw("s_waitcnt vmcnt(0)")
    p.raw(f"v_cmp_ne_u32 vcc, 1, v{V_FD}")
    p.raw("s_nop 4")
    p.raw("s_cmp_eq_u64 vcc, 0")
    p.raw("s_cbranch_scc1 L_done2")
    p.raw(f"s_sleep {SLEEP}")
    p.raw("s_sub_u32 s76, s76, 1")
    p.raw("s_cmp_lg_u32 s76, 0")
    p.raw("s_cbranch_scc1 L_poll2")
    p.raw("L_done2:")
    p.raw("s_barrier")
    p("L_end_k2:")
    p("s_endpgm")
    p("L_code_end:")
    load = p
    for q in (hd, comp, load): q.finalize()
    hd.ins = hd.ins + comp.ins + load.ins
    return hd

def kd(name, vgpr, sgpr=100):
    return f""".amdhsa_kernel {name}
  .amdhsa_next_free_vgpr {vgpr}
  .amdhsa_next_free_sgpr {sgpr}
  .amdhsa_accum_offset {vgpr}
  .amdhsa_group_segment_fixed_size 0
  .amdhsa_kernarg_size 104
  .amdhsa_user_sgpr_count 2
  .amdhsa_user_sgpr_kernarg_segment_ptr 1
  .amdhsa_system_sgpr_workgroup_id_x 1
.end_amdhsa_kernel
"""
def build(out):
    hdr = open("cdna_kernels/" + NAME + ".s.ref").read().split("; Override launch")[0]
    s = hdr
    s += "; @launch kernel=k1_kernel grid=(256,1,1) block=(512,1,1) lds=163840\n"
    s += "; @launch kernel=k2_kernel grid=(256,1,1) block=(512,1,1) lds=163840\n"
    s += '.amdgcn_target "amdgcn-amd-amdhsa--gfx950"\n.text\n'
    for nm, f in (("k1_kernel", k1), ("k2_kernel", k2)):
        s += f".globl {nm}\n.p2align 8\n.type {nm},@function\n{nm}:\n" + f().text()
    s += '.section .rodata,"a"\n.p2align 6\n'
    s += kd("k1_kernel", 256) + ".p2align 6\n" + kd("k2_kernel", 256)
    open(out, "w").write(s)
if __name__ == "__main__":
    if len(sys.argv) > 2 and sys.argv[2] == "stamp": STAMP = True
    build(sys.argv[1])
```

```python
import sys, math, os, struct
from asmlib import *
NAME = "concat_heads__mha_block_cached__gqa_block_cached__near_ridge"
WS_O = 0
WS_P = 16 << 20
WS_F = 48 << 20
WS_STAMP = 64 << 20
SCALE_LOG2E = (128 ** -0.5) * math.log2(math.e)
def f32bits(x): return struct.unpack('<I', struct.pack('<f', x))[0]
def vr(b, n=4): return f"v[{b}:{b+n-1}]"
def env(k, d): return os.environ.get(k, d)
STAMP = False
ROT = env("ROT", "1") == "1"
ROT2 = env("ROT2", "1") == "1"
POL = {"0": "", "1": " nt", "2": " sc1", "3": " sc0 sc1", "4": " sc0"}
NT_W = POL[env("NT_W", "0")]
NT_X = POL[env("NT_X", "0")]
NT_KV = POL[env("NT_KV", "1")]
NT_WO = " nt" if env("NT_WO", "0") == "1" else ""
NT_PF = " nt" if env("NT_PF", "0") == "1" else ""
O_ST = env("O_ST", " sc0 sc1")
DIST = int(env("DIST", "2"))
DIST2 = int(env("DIST2", "2"))
KV_START = int(env("KV_START", "2"))
KV_END = int(env("KV_END", "9"))
PFWO = int(env("PFWO", "8"))
SLEEP = int(env("SLEEP", "4"))
SPIN_MAX = 200000
NCPF = 2
SX, SK, SV, SWQ, SWS, SWO, SOUT = 40, 44, 48, 52, 56, 60, 64
V_LANE, V_G, V_I16, V_RR, V_CC, V_F, V_T0, V_T1, V_T2, V_L16 = 1, 2, 3, 4, 5, 6, 7, 8, 9, 10

def srd(p, d, lo, hi, size):
    p(f"s_mov_b32 s{d}, s{lo}\ns_mov_b32 s{d+1}, s{hi}\ns_mov_b32 s{d+2}, {size}\ns_mov_b32 s{d+3}, 0x20000")
def srd_sel(p, d, a, b, size):
    p(f"s_cselect_b32 s{d}, s{a}, s{b}\ns_cselect_b32 s{d+1}, s{a+1}, s{b+1}\ns_mov_b32 s{d+2}, {size}\ns_mov_b32 s{d+3}, 0x20000")
def stamp(p, slot):
    if STAMP: p(f"s_memrealtime s[{80+2*slot}:{81+2*slot}]")
def stamp_end(p, kidx, vt):
    if STAMP and env("DBGSTAMP", "0") == "1" and kidx == 1:
        p("s_waitcnt vmcnt(0)")
        stamp(p, 6)
        p("s_waitcnt lgkmcnt(0)")
        p("s_lshl_b32 s96, s2, 2")
        p("s_or_b32 s96, s96, s3")
        p("s_cmp_lg_u32 s96, 308")
        p(f"s_cbranch_scc1 L_nost{kidx}")
        p(f"s_mov_b32 s68, s38\ns_mov_b32 s69, s39\ns_mov_b32 s70, 256\ns_mov_b32 s71, 0x20000")
        p(f"v_mov_b32 v{vt+8}, 0")
        p(f"s_mov_b32 s96, {WS_STAMP + 308*32}")
        p.raw(f"buffer_load_dwordx4 v[{vt+12}:{vt+15}], v{vt+8}, s[{SWS}:{SWS+3}], s96 offen")
        p.raw(f"buffer_load_dwordx4 v[{vt+16}:{vt+19}], v{vt+8}, s[{SWS}:{SWS+3}], s96 offen offset:16")
        for i in range(8):
            p.raw(f"v_mov_b32 v{vt+i}, s{80+2*i}")
        p.raw("s_waitcnt vmcnt(0)")
        p.raw(f"buffer_store_dwordx4 v[{vt+12}:{vt+15}], v{vt+8}, s[68:71], 0 offen")
        p.raw(f"buffer_store_dwordx4 v[{vt+16}:{vt+19}], v{vt+8}, s[68:71], 0 offen offset:16")
        p.raw(f"buffer_store_dwordx4 v[{vt}:{vt+3}], v{vt+8}, s[68:71], 0 offen offset:32")
        p.raw(f"buffer_store_dwordx4 v[{vt+4}:{vt+7}], v{vt+8}, s[68:71], 0 offen offset:48")
        p(f"L_nost{kidx}:")
        return
    if STAMP:
        p("s_waitcnt vmcnt(0)")
        stamp(p, 6)
        p("s_waitcnt lgkmcnt(0)")
        p(f"s_lshl_b32 s96, s2, 2\ns_add_u32 s96, s96, s3\ns_lshl_b32 s96, s96, 5\ns_add_u32 s96, s96, {WS_STAMP + kidx*65536}")
        for i in range(8): p(f"v_mov_b32 v{vt+i}, s{80+2*i}")
        p(f"""
        v_mov_b32 v{vt+8}, 0
        buffer_store_dwordx4 v[{vt}:{vt+3}], v{vt+8}, s[{SWS}:{SWS+3}], s96 offen
        buffer_store_dwordx4 v[{vt+4}:{vt+7}], v{vt+8}, s[{SWS}:{SWS+3}], s96 offen offset:16
        """)

def head(tag):
    p = Prog()
    p("s_cmp_ge_u32 s2, 256")
    p(f"s_cbranch_scc1 L_end_{tag}")
    if STAMP:
        for i in range(80, 96): p(f"s_mov_b32 s{i}, 0")
    stamp(p, 0)
    if STAMP: p("s_getreg_b32 s90, hwreg(HW_REG_XCC_ID)")
    p("""
    s_load_dwordx16 s[16:31], s[0:1], 0
    s_load_dwordx8 s[32:39], s[0:1], 64
    s_load_dwordx2 s[14:15], s[0:1], 96
    """)
    p(f"""
    v_and_b32 v{V_LANE}, 63, v0
    v_lshrrev_b32 v{V_T0}, 6, v0
    v_lshrrev_b32 v{V_G}, 4, v{V_LANE}
    v_readfirstlane_b32 s79, v{V_T0}
    v_and_b32 v{V_I16}, 15, v0
    v_bfe_u32 v{V_RR}, v0, 2, 2
    v_and_b32 v{V_CC}, 3, v0
    v_lshlrev_b32 v{V_L16}, 4, v{V_LANE}
    s_and_b32 s3, s79, 3
    s_and_b32 s4, s2, 7
    s_lshr_b32 s5, s2, 3
    s_lshr_b32 s6, s4, 2
    s_and_b32 s7, s4, 3
    s_lshr_b32 s8, s5, 2
    s_and_b32 s9, s5, 3
    """)
    p("s_waitcnt lgkmcnt(0)")
    p("s_cmp_eq_u32 s6, 0")
    if tag == "k1":
        srd_sel(p, SX, 16, 26, 983040)
        srd_sel(p, SK, 18, 28, 6291456)
        srd_sel(p, SV, 20, 30, 6291456)
        srd_sel(p, SWQ, 22, 32, 5242880)
    srd_sel(p, SWO, 24, 34, 5242880)
    srd(p, SWS, 14, 15, 0x10000000)
    if tag == "k2": srd(p, SOUT, 36, 37, 16*48*1280*2)
    p("""
    s_lshl_b32 s16, s7, 3
    s_add_u32 s16, s16, s8
    s_lshl_b32 s17, s9, 1
    s_lshr_b32 s10, s8, 2
    s_add_u32 s17, s17, s10
    s_and_b32 s18, s8, 3
    """)
    p("s_cmp_ge_u32 s79, 4")
    p(f"s_cbranch_scc1 L_loader_{tag}")
    return p

def k1():
    NSL = 4
    LX = 65536
    hd = head("k1")
    p = Prog()
    V_XR = 11; V_TR = 13; V_TV = 21; V_KR = 29
    T3 = 37
    FR = 40; ACC = 136; TMP = 232
    if env("CODEPF", "1") == "1":
        p("s_getpc_b64 s[30:31]")
        p("L_pc0:")
        p("s_mov_b32 s10, (L_code_end - L_pc0 - 4)")
        p(f"v_lshlrev_b32 v{TMP}, 7, v{V_LANE}")
        p(f"s_lshl_b32 s11, s3, 13")
        p(f"v_add_u32 v{TMP}, s11, v{TMP}")
        for i in range(NCPF):
            p(f"v_add_u32 v{TMP+1}, {i*32768}, v{TMP}")
            p(f"v_min_u32 v{TMP+1}, s10, v{TMP+1}")
            p(f"global_load_dword v{TMP+2+i}, v{TMP+1}, s[30:31]")
    p(f"""
    s_mul_i32 s10, s3, 24576
    s_add_u32 s77, s10, {LX}
    s_lshl_b32 s22, s9, 2
    s_add_u32 s22, s22, s3
    v_and_b32 v{V_T0}, 1, v{V_G}
    v_lshlrev_b32 v{V_T0}, 2, v{V_T0}
    v_or_b32 v{V_F}, v{V_RR}, v{V_T0}
    v_lshrrev_b32 v{V_T0}, 1, v{V_I16}
    v_xor_b32 v{V_T0}, v{V_T0}, v{V_G}
    v_lshlrev_b32 v{V_T1}, 7, v{V_I16}
    v_add_u32 v{V_T1}, s77, v{V_T1}
    v_lshl_add_u32 v{V_XR}, v{V_T0}, 4, v{V_T1}
    v_xor_b32 v{V_T0}, 4, v{V_T0}
    v_lshl_add_u32 v{V_XR+1}, v{V_T0}, 4, v{V_T1}
    v_lshl_add_u32 v{V_T0}, v{V_G}, 3, v{V_RR}
    v_lshlrev_b32 v{V_T0}, 8, v{V_T0}
    v_lshl_add_u32 v{V_T0}, v{V_CC}, 3, v{V_T0}
    v_lshl_add_u32 v{V_T1}, v{V_G}, 2, v{V_RR}
    v_lshlrev_b32 v{V_T1}, 8, v{V_T1}
    v_lshl_add_u32 v{V_T1}, v{V_CC}, 3, v{V_T1}
    v_add_u32 v{V_T1}, s77, v{V_T1}
    """)
    for t in range(8):
        p(f"""
        v_xor_b32 v{TMP}, {t}, v{V_F}
        v_lshl_add_u32 v{V_TR+t}, v{TMP}, 5, v{V_T0}
        v_lshl_add_u32 v{V_TV+t}, v{TMP}, 5, v{V_T1}
        """)
    p(f"""
    v_lshrrev_b32 v{V_T0}, 1, v{V_G}
    v_xor_b32 v{V_T0}, v{V_T0}, v{V_I16}
    v_and_b32 v{V_T1}, 1, v{V_G}
    v_lshlrev_b32 v{V_T1}, 3, v{V_T1}
    v_lshl_add_u32 v{V_T1}, v{V_I16}, 8, v{V_T1}
    v_add_u32 v{V_T1}, s77, v{V_T1}
    """)
    for j in range(8):
        p(f"""
        v_xor_b32 v{TMP}, {2*j}, v{V_T0}
        v_lshl_add_u32 v{V_KR+j}, v{TMP}, 4, v{V_T1}
        """)
    p(f"""
    s_mul_i32 s10, s6, 48
    s_mul_i32 s11, s22, 3
    s_add_u32 s10, s10, s11
    s_lshl_b32 s10, s10, 7
    s_lshl_b32 s11, s16, 2
    s_add_u32 s10, s10, s11
    s_lshl_b32 s24, s10, 10
    s_add_u32 s25, s24, 131072
    s_add_u32 s26, s24, 262144
    s_mov_b32 s98, {f32bits(SCALE_LOG2E)}
    """)
    def run(items):
        for x in items:
            if callable(x): x()
            else: p(x)
    def reads(s):
        c, ks = s // 2, s % 2
        it = []
        fb = FR + (s % 2) * 44
        for u in range(3):
            it.append(f"ds_read_b128 {vr(fb + 32 + u*4)}, v{V_XR + ks} offset:{(c % NSL)*6144 + u*2048}")
        off0 = (c % NSL) * 16384 + ks * 8192
        for t in range(8):
            for hf in range(2):
                it.append(f"ds_read_b64_tr_b16 {vr(fb + t*4 + 2*hf, 2)}, v{V_TR+t} offset:{off0 + hf*1024}")
        return it
    def mfmas(s, order_u=False):
        it = []
        fb = FR + (s % 2) * 44
        idx = [(t, u) for u in range(3) for t in range(8)] if order_u else [(t, u) for t in range(8) for u in range(3)]
        for t, u in idx:
            a = ACC + (t*3+u)*4
            c = "0" if s == 0 else vr(a)
            it.append(f"v_mfma_f32_16x16x32_bf16 {vr(a)}, {vr(fb + t*4)}, {vr(fb + 32 + u*4)}, {c}")
        return it
    def KF(i): return 40 + 4*i if i < 11 else 128
    def QF(i): return 84 + 4*i if i < 11 else 132
    kreads = [f"ds_read_b64 {vr(KF(kt*4+T) + 2*hf, 2)}, v{V_KR + 2*T + hf} offset:{12288 + kt*4096}" for kt in range(3) for T in range(4) for hf in range(2)]
    p("s_barrier")
    stamp(p, 1)
    run(reads(0))
    for s in range(20):
        if s % 2 == 1:
            p.wait_lg(0)
            p("s_barrier")
        side = reads(s + 1) if s < 19 else []
        interleave(p, mfmas(s, order_u=(s == 19)), side, ratio=1)
    stamp(p, 2)
    ST = ACC
    VF = ACC + 40
    PFR = TMP
    AO = 40
    def cvtq(u):
        it = []
        for T in range(4):
            for k in range(4):
                a = ACC + ((2*T + k//2)*3 + u)*4 + 2*(k%2)
                it.append(f"v_cvt_pk_bf16_f32 v{QF(T*3+u) + k}, v{a}, v{a+1}")
        return it
    def st(u):
        it = []
        for T in range(4):
            for kt in range(3):
                d = ST + (kt*3+u)*4
                c = "0" if T == 0 else vr(d)
                it.append(f"v_mfma_f32_16x16x32_bf16 {vr(d)}, {vr(KF(kt*4+T))}, {vr(QF(T*3+u))}, {c}")
        return it
    def sm(u):
        it = []
        vals = [ST + (kt*3+u)*4 + r for kt in range(3) for r in range(4)]
        m, t2, sm_ = T3, T3+1, T3+2
        it.append(f"v_max3_f32 v{m}, v{vals[0]}, v{vals[1]}, v{vals[2]}")
        it.append(f"v_max3_f32 v{t2}, v{vals[3]}, v{vals[4]}, v{vals[5]}")
        it.append(f"v_max3_f32 v{m}, v{m}, v{vals[6]}, v{vals[7]}")
        it.append(f"v_max3_f32 v{t2}, v{t2}, v{vals[8]}, v{vals[9]}")
        it.append(f"v_max3_f32 v{m}, v{m}, v{vals[10]}, v{vals[11]}")
        it.append(f"v_max_f32 v{m}, v{m}, v{t2}")
        it += [f"v_mov_b32 v{t2}, v{m}", f"v_permlane16_swap_b32 v{m}, v{t2}", f"v_max_f32 v{m}, v{m}, v{t2}",
               f"v_mov_b32 v{t2}, v{m}", f"v_permlane32_swap_b32 v{m}, v{t2}", f"v_max_f32 v{m}, v{m}, v{t2}",
               f"v_mul_f32 v{m}, s98, v{m}"]
        for v in vals: it.append(f"v_fma_f32 v{v}, v{v}, s98, -v{m}")
        for v in vals: it.append(f"v_exp_f32 v{v}, v{v}")
        it.append(f"v_add_f32 v{sm_}, v{vals[0]}, v{vals[1]}")
        it.append(f"v_add_f32 v{t2}, v{vals[2]}, v{vals[3]}")
        for i in range(4, 12, 2):
            it.append(f"v_add_f32 v{sm_}, v{sm_}, v{vals[i]}")
            it.append(f"v_add_f32 v{t2}, v{t2}, v{vals[i+1]}")
        it.append(f"v_add_f32 v{sm_}, v{sm_}, v{t2}")
        it += [f"v_mov_b32 v{t2}, v{sm_}", f"v_permlane16_swap_b32 v{sm_}, v{t2}", f"v_add_f32 v{sm_}, v{sm_}, v{t2}",
               f"v_mov_b32 v{t2}, v{sm_}", f"v_permlane32_swap_b32 v{sm_}, v{t2}", f"v_add_f32 v{sm_}, v{sm_}, v{t2}",
               f"v_rcp_f32 v{sm_}, v{sm_}"]
        for v in vals: it.append(f"v_mul_f32 v{v}, v{v}, v{sm_}")
        for i in range(6): it.append(f"v_cvt_pk_bf16_f32 v{PFR + u*8 + i}, v{vals[2*i]}, v{vals[2*i+1]}")
        return it
    def pv(u):
        it = []
        for t in range(8):
            d = AO + (t*3+u)*4
            it.append(f"v_mfma_f32_16x16x32_bf16 {vr(d)}, {vr(VF + t*6)}, {vr(PFR + u*8)}, 0")
        for t in range(8):
            d = AO + (t*3+u)*4
            it.append(f"v_mfma_f32_16x16x16_bf16 {vr(d)}, {vr(VF + t*6 + 4, 2)}, {vr(PFR + u*8 + 4, 2)}, {vr(d)}")
        return it
    def cvto(u):
        it = []
        for T in range(4):
            r0 = AO + ((2*T)*3 + u)*4
            r1 = AO + ((2*T+1)*3 + u)*4
            it += [f"v_cvt_pk_bf16_f32 v{r0}, v{r0}, v{r0+1}", f"v_cvt_pk_bf16_f32 v{r0+1}, v{r0+2}, v{r0+3}",
                   f"v_cvt_pk_bf16_f32 v{r0+2}, v{r1}, v{r1+1}", f"v_cvt_pk_bf16_f32 v{r0+3}, v{r1+2}, v{r1+3}",
                   f"buffer_store_dwordx4 {vr(r0)}, v{V_L16}, s[{SWS}:{SWS+3}], s{24+u} offen offset:{T*1024}{O_ST}"]
        return it
    vreads = [f"ds_read_b64_tr_b16 {vr(VF + t*6 + 2*kp, 2)}, v{V_TV+t} offset:{kp*4096}" for t in range(8) for kp in range(3)]
    run(cvtq(0))
    p("s_barrier")
    stamp(p, 3)
    interleave(p, kreads, cvtq(1) + cvtq(2), ratio=2)
    run(st(0))
    s0 = sm(0)
    interleave(p, st(1) + st(2), s0, ratio=3, start=2)
    p("s_barrier")
    stamp(p, 4)
    s1 = sm(1)
    interleave(p, vreads, s1[:24], ratio=1)
    interleave(p, pv(0), s1[24:], ratio=4)
    interleave(p, pv(1), sm(2) , ratio=5)
    run(cvto(0))
    interleave(p, pv(2), cvto(1), ratio=2)
    run(cvto(2))
    stamp_end(p, 0, 136)
    p("s_endpgm")
    comp = p

    p = Prog()
    p("L_loader_k1:")
    p("s_cmp_ge_u32 s79, 6")
    p("s_cbranch_scc1 L_kv")
    V_DA, V_DB, V_XD, V_PF = 11, 12, 13, 16
    p(f"""
    s_and_b32 s23, s79, 1
    v_lshlrev_b32 v{V_T0}, 1, v{V_G}
    v_xor_b32 v{V_T0}, v{V_T0}, v{V_I16}
    v_lshlrev_b32 v{V_T0}, 4, v{V_T0}
    v_lshl_add_u32 v{V_DA}, v{V_G}, 13, v{V_T0}
    v_xor_b32 v{V_DB}, 0x80, v{V_DA}
    v_lshrrev_b32 v{V_T0}, 3, v{V_LANE}
    v_mul_u32_u24 v{V_T0}, 1280, v{V_T0}
    v_and_b32 v{V_T1}, 7, v{V_LANE}
    v_xor_b32 v{V_T1}, v{V_T1}, v{V_G}
    v_lshl_add_u32 v{V_XD}, v{V_T1}, 4, v{V_T0}
    v_xor_b32 v{V_T1}, 4, v{V_T1}
    v_lshl_add_u32 v{V_XD+1}, v{V_T1}, 4, v{V_T0}
    s_lshl_b32 s24, s16, 8
    s_lshl_b32 s10, s23, 18
    s_add_u32 s24, s24, s10
    s_lshl_b32 s25, s23, 13
    s_lshl_b32 s22, s9, 2
    s_lshl_b32 s10, s23, 1
    s_add_u32 s22, s22, s10
    s_mul_i32 s26, s22, 61440
    s_mul_i32 s77, s23, 49152
    s_add_u32 s77, s77, {LX}
    s_mul_i32 s10, s9, 5
    s_lshr_b32 s10, s10, 1
    s_mul_i32 s11, s8, 5
    s_lshr_b32 s11, s11, 2
    s_add_u32 s72, s10, s11
    s_cmp_ge_u32 s72, 10
    s_cselect_b32 s10, 10, 0
    s_sub_u32 s72, s72, s10
    """)
    if not ROT: p("s_mov_b32 s72, 0")
    def chunk_loads(c):
        if c > 0:
            p("s_add_u32 s72, s72, 1\ns_cmp_ge_u32 s72, 10\ns_cselect_b32 s10, 10, 0\ns_sub_u32 s72, s72, s10")
        p("s_lshl_b32 s73, s72, 19\ns_add_u32 s73, s73, s24\ns_lshl_b32 s74, s72, 7\ns_add_u32 s74, s74, s26")
        for i in range(8):
            p(f"s_add_u32 m0, s25, {(c % NSL)*16384 + i*1024}")
            p(f"s_add_u32 s97, s73, {(4*i) * 8192}")
            p(f"buffer_load_dwordx4 v{V_DA if (i % 4) < 2 else V_DB}, s[{SWQ}:{SWQ+3}], s97 offen{NT_W} lds", tag=f"c{c}")
        for ww in range(2):
            for j in range(6):
                p(f"s_add_u32 m0, s77, {ww*24576 + (c % NSL)*6144 + j*1024}")
                p(f"s_add_u32 s97, s74, {ww*61440 + j * 10240}")
                p(f"buffer_load_dwordx4 v{V_XD + j % 2}, s[{SX}:{SX+3}], s97 offen{NT_X} lds", tag=f"c{c}")
    def pf_wo():
        p(f"""
        s_lshl_b32 s10, s5, 1
        s_add_u32 s10, s10, s23
        s_lshl_b32 s11, s7, 6
        s_add_u32 s10, s10, s11
        s_mul_i32 s75, s10, 20480
        v_lshlrev_b32 v{V_PF}, 7, v{V_LANE}
        v_add_u32 v{V_PF+1}, 8192, v{V_PF}
        v_add_u32 v{V_PF+2}, 16384, v{V_PF}
        v_cmp_lt_u32 vcc, 31, v{V_LANE}
        v_cndmask_b32 v{V_PF+2}, v{V_PF+2}, -1, vcc
        buffer_load_dword v{V_PF+4}, v{V_PF}, s[{SWO}:{SWO+3}], s75 offen{NT_PF}
        buffer_load_dword v{V_PF+5}, v{V_PF+1}, s[{SWO}:{SWO+3}], s75 offen{NT_PF}
        buffer_load_dword v{V_PF+6}, v{V_PF+2}, s[{SWO}:{SWO+3}], s75 offen{NT_PF}
        """)
    p(f"""
    s_lshl_b32 s10, s2, 7
    s_add_u32 s10, s10, {WS_F}
    v_mov_b32 v{V_PF}, 0
    buffer_store_dword v{V_PF}, v{V_PF}, s[{SWS}:{SWS+3}], s10 offen
    """)
    for c in range(DIST): chunk_loads(c)
    for c in range(10):
        p.wait_tag(f"c{c}"); p("s_barrier")
        if c + DIST < 10: chunk_loads(c + DIST)
        if c == PFWO: pf_wo()
    p("s_barrier")
    if PFWO == 10: pf_wo()
    p("s_endpgm")
    load1 = p
    p = Prog()
    p("L_kv:")
    V_VA, V_VB, V_WR, V_KD = 11, 12, 13, 14
    RS = 32
    p(f"""
    s_and_b32 s23, s79, 1
    v_lshlrev_b32 v{V_T0}, 1, v{V_G}
    v_xor_b32 v{V_T0}, v{V_T0}, v{V_I16}
    v_lshlrev_b32 v{V_T0}, 4, v{V_T0}
    v_lshl_add_u32 v{V_VA}, v{V_G}, 8, v{V_T0}
    v_xor_b32 v{V_VB}, 0x80, v{V_VA}
    s_mul_i32 s77, s23, 49152
    s_add_u32 s77, s77, {LX}
    v_add_u32 v{V_WR}, s77, v{V_L16}
    v_xor_b32 v{V_T0}, v{V_G}, v{V_I16}
    v_lshlrev_b32 v{V_T0}, 4, v{V_T0}
    v_lshl_add_u32 v{V_KD}, v{V_G}, 8, v{V_T0}
    v_xor_b32 v{V_KD+1}, 0x40, v{V_KD}
    v_xor_b32 v{V_KD+2}, 0x80, v{V_KD}
    v_xor_b32 v{V_KD+3}, 0xc0, v{V_KD}
    s_lshl_b32 s22, s9, 2
    s_lshl_b32 s10, s23, 1
    s_add_u32 s22, s22, s10
    s_lshl_b32 s10, s22, 5
    s_add_u32 s10, s10, s16
    s_mul_i32 s24, s10, 12288
    s_add_u32 s25, s24, 4096
    s_add_u32 s26, s24, 8192
    s_add_u32 s27, s24, 393216
    s_add_u32 s28, s27, 4096
    s_add_u32 s29, s27, 8192
    """)
    kv = []
    for ww in range(2):
        kv += [f"buffer_load_dwordx4 {vr(RS + ww*96 + i*4)}, v{V_KD + i % 4}, s[{SK}:{SK+3}], s{24 + 3*ww + i//4} offen offset:{(i%4)*1024}{NT_KV}" for i in range(12)]
    for ww in range(2):
        kv += [f"buffer_load_dwordx4 {vr(RS + ww*96 + 48 + i*4)}, v{V_VA if i % 2 == 0 else V_VB}, s[{SV}:{SV+3}], s{24 + 3*ww + i//4} offen offset:{(i%4)*1024}{NT_KV}" for i in range(12)]
    nb = KV_END - KV_START
    per = (len(kv) + nb - 1) // nb
    for c in range(-1, 11):
        if c >= 0: p("s_barrier")
        if c >= KV_START:
            for x in kv[:per]: p(x)
            kv = kv[per:]
    for x in kv: p(x)
    for ww in range(2):
        for i in range(12):
            p(f"ds_write_b128 v{V_WR}, {vr(RS + ww*96 + i*4)} offset:{ww*24576 + 12288 + i*1024}")
    p.wait_lg(0)
    p("s_barrier")
    for ww in range(2):
        for i in range(12):
            p(f"ds_write_b128 v{V_WR}, {vr(RS + ww*96 + 48 + i*4)} offset:{ww*24576 + i*1024}")
    p.wait_lg(0)
    p("s_barrier")
    p("L_end_k1:")
    p("s_endpgm")
    load2 = p
    for q in (hd, comp, load1, load2): q.finalize()
    hd.ins = hd.ins + comp.ins + load1.ins + load2.ins
    return hd

def k2():
    NS = 5
    p = Prog()
    p("s_cmp_ge_u32 s2, 240")
    p("s_cbranch_scc1 L_end_k2")
    if STAMP:
        for i in range(80, 96): p(f"s_mov_b32 s{i}, 0")
    stamp(p, 0)
    p("""
    s_load_dwordx2 s[24:25], s[0:1], 32
    s_load_dwordx2 s[34:35], s[0:1], 72
    s_load_dwordx2 s[36:37], s[0:1], 80
    s_load_dwordx2 s[14:15], s[0:1], 96
    """)
    if STAMP: p("s_load_dwordx2 s[38:39], s[0:1], 88")
    p(f"""
    v_and_b32 v{V_LANE}, 63, v0
    v_lshrrev_b32 v{V_T0}, 6, v0
    v_lshrrev_b32 v{V_G}, 4, v{V_LANE}
    v_readfirstlane_b32 s79, v{V_T0}
    v_and_b32 v{V_I16}, 15, v0
    v_lshlrev_b32 v{V_L16}, 4, v{V_LANE}
    s_and_b32 s4, s2, 7
    s_lshr_b32 s5, s2, 3
    s_lshr_b32 s6, s4, 2
    s_and_b32 s7, s4, 3
    s_mul_i32 s17, s5, 13
    s_lshr_b32 s17, s17, 6
    s_mul_i32 s10, s17, 5
    s_sub_u32 s18, s5, s10
    s_and_b32 s3, s79, 3
    """)
    p("s_waitcnt lgkmcnt(0)")
    p("s_cmp_eq_u32 s6, 0")
    srd_sel(p, SWO, 24, 34, 5242880)
    srd(p, SWS, 14, 15, 0x10000000)
    srd(p, SOUT, 36, 37, 16*48*1280*2)
    p("s_cmp_ge_u32 s79, 4")
    p("s_cbranch_scc1 L_loader_k2")
    hd = p
    p = Prog()
    V_A = 11
    V_B = 23
    V_OUT = 26
    FR2 = 32; ACC2 = 96; D = 160
    p(f"""
    v_bfe_u32 v{V_RR}, v0, 2, 2
    v_and_b32 v{V_CC}, 3, v0
    s_lshr_b32 s10, s3, 1
    s_and_b32 s11, s3, 1
    v_and_b32 v{V_T0}, 1, v{V_G}
    v_lshlrev_b32 v{V_T0}, 2, v{V_T0}
    v_or_b32 v{V_F}, v{V_RR}, v{V_T0}
    v_lshl_add_u32 v{V_T0}, v{V_G}, 2, v{V_RR}
    v_lshlrev_b32 v{V_T0}, 8, v{V_T0}
    v_lshl_add_u32 v{V_T0}, v{V_CC}, 3, v{V_T0}
    s_lshl_b32 s13, s11, 2
    """)
    for tt in range(4):
        p(f"""
        s_add_u32 s12, s13, {tt}
        v_xor_b32 v{V_T2}, s12, v{V_F}
        v_lshl_add_u32 v{V_A+tt}, v{V_T2}, 5, v{V_T0}
        v_add_u32 v{V_A+4+tt}, 0x10000, v{V_A+tt}
        v_add_u32 v{V_A+8+tt}, 0x20000, v{V_A+tt}
        """)
    p(f"""
    s_lshl_b32 s13, s10, 13
    v_add_u32 v{V_B}, s13, v{V_L16}
    v_add_u32 v{V_B+1}, 0x10000, v{V_B}
    v_add_u32 v{V_B+2}, 0x20000, v{V_B}
    v_mul_u32_u24 v{V_OUT}, 2560, v{V_I16}
    v_lshl_add_u32 v{V_OUT}, v{V_G}, 3, v{V_OUT}
    s_mul_i32 s13, s6, 30
    s_add_u32 s13, s13, s5
    s_lshl_b32 s13, s13, 4
    s_add_u32 s13, s13, s3
    s_lshl_b32 s27, s13, 14
    s_add_u32 s27, s27, {WS_P}
    s_lshl_b32 s12, s7, 16
    s_add_u32 s28, s27, s12
    s_lshl_b32 s13, s17, 7
    s_lshl_b32 s12, s10, 6
    s_add_u32 s13, s13, s12
    s_mul_i32 s29, s13, 2560
    s_mul_i32 s13, s6, 1280
    s_add_u32 s29, s29, s13
    s_lshl_b32 s13, s18, 8
    s_add_u32 s29, s29, s13
    s_lshl_b32 s13, s11, 7
    s_add_u32 s29, s29, s13
    s_lshl_b32 s13, s7, 5
    s_add_u32 s29, s29, s13
    """)
    def run(items):
        for x in items:
            if callable(x): x()
            else: p(x)
    def reads2(s):
        c, ks = s // 2, s % 2
        base = (c % NS) * 32768
        fb = FR2 + (s % 2) * 32
        it = []
        for u in range(4):
            off = base + (u*2 + ks) * 1024
            it.append(f"ds_read_b128 {vr(fb + 16 + u*4)}, v{V_B + off // 65536} offset:{off % 65536}")
        for tt in range(4):
            for hf in range(2):
                off = base + 16384 + ks*8192 + hf*4096
                it.append(f"ds_read_b64_tr_b16 {vr(fb + tt*4 + 2*hf, 2)}, v{V_A + 4*(off // 65536) + tt} offset:{off % 65536}")
        return it
    def mfmas2(s):
        fb = FR2 + (s % 2) * 32
        it = []
        for tt in range(4):
            for u in range(4):
                a = ACC2 + (tt*4+u)*4
                c = "0" if s == 0 else vr(a)
                it.append(f"v_mfma_f32_16x16x32_bf16 {vr(a)}, {vr(fb + tt*4)}, {vr(fb + 16 + u*4)}, {c}")
        return it
    p("s_barrier")
    stamp(p, 1)
    run(reads2(0))
    for s in range(32):
        if s % 2 == 1 and s < 31: p("s_barrier")
        side = reads2(s + 1) if s < 31 else []
        interleave(p, mfmas2(s), side, ratio=1)
    stamp(p, 2)
    p("s_nop 15")
    for q in range(4):
        p(f"s_cmp_eq_u32 s7, {q}")
        p(f"s_cbranch_scc1 L_skipq{q}")
        p(f"s_add_u32 s30, s28, {q*4096}")
        for i in range(4):
            p.raw(f"buffer_store_dwordx4 {vr(ACC2 + (4*q+i)*4)}, v{V_L16}, s[{SWS}:{SWS+3}], s30 offen offset:{i*1024} sc1")
        p(f"s_branch L_nown{q}")
        p(f"L_skipq{q}:")
        for i in range(16):
            p.raw(f"v_mov_b32 v{FR2 + i}, v{ACC2 + 16*q + i}")
        p(f"L_nown{q}:")
    p("s_waitcnt vmcnt(0)")
    stamp(p, 3)
    p("s_barrier")
    p("s_barrier")
    stamp(p, 4)
    p("s_lshl_b32 s31, s7, 12")
    p("s_add_u32 s31, s31, s27")
    for jj in range(3):
        p(f"s_add_u32 s30, s7, {jj+1}\ns_and_b32 s30, s30, 3\ns_lshl_b32 s30, s30, 16\ns_add_u32 s30, s30, s31")
        for i in range(4):
            p(f"buffer_load_dwordx4 {vr(D + (jj*4+i)*4)}, v{V_L16}, s[{SWS}:{SWS+3}], s30 offen offset:{i*1024} sc1")
    for i in range(4):
        b0 = FR2 + i*4
        b1, b2, b3 = [D + (j*4+i)*4 for j in range(3)]
        for r in range(4):
            p(f"v_add_f32 v{b0+r}, v{b0+r}, v{b1+r}")
            p(f"v_add_f32 v{b2+r}, v{b2+r}, v{b3+r}")
            p(f"v_add_f32 v{b0+r}, v{b0+r}, v{b2+r}")
        p(f"v_cvt_pk_bf16_f32 v{b1}, v{b0}, v{b0+1}")
        p(f"v_cvt_pk_bf16_f32 v{b1+1}, v{b0+2}, v{b0+3}")
        p(f"s_add_u32 s30, s29, {i*40960}")
        p(f"buffer_store_dwordx2 {vr(b1, 2)}, v{V_OUT}, s[{SOUT}:{SOUT+3}], s30 offen")
    stamp_end(p, 1, 60)
    p("s_endpgm")
    comp = p
    p = Prog()
    p("L_loader_k2:")
    V_WA, V_WB, V_FL, V_FD = 11, 12, 16, 18
    p(f"""
    s_mul_i32 s13, s6, 48
    s_lshl_b32 s12, s17, 3
    s_add_u32 s13, s13, s12
    s_lshl_b32 s12, s3, 1
    s_add_u32 s13, s13, s12
    s_lshl_b32 s13, s13, 7
    s_lshl_b32 s12, s7, 5
    s_add_u32 s13, s13, s12
    s_lshl_b32 s24, s13, 10
    s_lshl_b32 s25, s3, 12
    """)
    def dma_o(c):
        slot = c % NS
        if "o" in env("SKIP2", ""): return
        for i in range(2):
            for ks in range(2):
                p(f"s_add_u32 m0, s25, {slot*32768 + (i*2+ks)*1024}")
                p(f"s_add_u32 s97, s24, {WS_O + i*131072 + (2*c+ks)*1024}")
                p(f"buffer_load_dwordx4 v{V_L16}, s[{SWS}:{SWS+3}], s97 offen lds", tag=f"c{c}")
    def dma_w(c):
        slot = c % NS
        if "w" in env("SKIP2", ""): return
        for i in range(4):
            p(f"s_add_u32 m0, s27, {slot*32768 + i*1024}")
            p(f"s_add_u32 s97, s26, {(64*c + 4*i)*1280}")
            p(f"buffer_load_dwordx4 v{V_WA if i % 2 == 0 else V_WB}, s[{SWO}:{SWO+3}], s97 offen{NT_WO} lds", tag=f"c{c}")
    dma_o(0)
    p(f"""
    v_lshlrev_b32 v{V_T0}, 1, v{V_G}
    v_xor_b32 v{V_T0}, v{V_T0}, v{V_I16}
    v_lshlrev_b32 v{V_T0}, 4, v{V_T0}
    v_mul_u32_u24 v{V_T1}, 1280, v{V_G}
    v_add_u32 v{V_WA}, v{V_T0}, v{V_T1}
    v_xor_b32 v{V_T0}, 0x80, v{V_T0}
    v_add_u32 v{V_WB}, v{V_T0}, v{V_T1}
    s_lshl_b32 s13, s7, 10
    s_lshl_b32 s12, s3, 4
    s_add_u32 s13, s13, s12
    s_mul_i32 s13, s13, 1280
    s_lshl_b32 s12, s18, 8
    s_add_u32 s26, s13, s12
    s_lshl_b32 s27, s3, 12
    s_add_u32 s27, s27, 16384
    """)
    dma_w(0)
    nxt = 1
    for c in range(1, DIST2): dma_o(c); dma_w(c); nxt += 1
    p(f"""
    s_lshl_b32 s10, s2, 7
    s_add_u32 s10, s10, {WS_F}
    v_mov_b32 v{V_FL}, s10
    s_and_b32 s10, s2, 0xfc
    s_lshl_b32 s10, s10, 7
    s_add_u32 s10, s10, {WS_F}
    v_and_b32 v{V_T0}, 3, v{V_LANE}
    v_lshlrev_b32 v{V_T0}, 7, v{V_T0}
    v_add_u32 v{V_FL+1}, s10, v{V_T0}
    """)
    for c in range(16):
        p.wait_tag(f"c{c}"); p("s_barrier")
        if nxt <= min(15, c + DIST2): dma_o(nxt); dma_w(nxt); nxt += 1
    p("s_cmp_lg_u32 s79, 4")
    p("s_cbranch_scc1 L_end_k2")
    p.raw("s_barrier")
    p.raw(f"v_mov_b32 v{V_FD}, 1")
    p.raw(f"buffer_store_dword v{V_FD}, v{V_FL}, s[{SWS}:{SWS+3}], 0 offen sc1")
    p.raw(f"s_mov_b32 s76, {SPIN_MAX}")
    p.raw("L_poll2:")
    p.raw(f"buffer_load_dword v{V_FD}, v{V_FL+1}, s[{SWS}:{SWS+3}], 0 offen sc1")
    p.raw("s_waitcnt vmcnt(0)")
    p.raw(f"v_cmp_ne_u32 vcc, 1, v{V_FD}")
    p.raw("s_nop 4")
    p.raw("s_cmp_eq_u64 vcc, 0")
    p.raw("s_cbranch_scc1 L_done2")
    p.raw(f"s_sleep {SLEEP}")
    p.raw("s_sub_u32 s76, s76, 1")
    p.raw("s_cmp_lg_u32 s76, 0")
    p.raw("s_cbranch_scc1 L_poll2")
    p.raw("L_done2:")
    p.raw("s_barrier")
    p("L_end_k2:")
    p("s_endpgm")
    p("L_code_end:")
    load = p
    for q in (hd, comp, load): q.finalize()
    hd.ins = hd.ins + comp.ins + load.ins
    return hd

def kd(name, vgpr, sgpr=100):
    return f""".amdhsa_kernel {name}
  .amdhsa_next_free_vgpr {vgpr}
  .amdhsa_next_free_sgpr {sgpr}
  .amdhsa_accum_offset {vgpr}
  .amdhsa_group_segment_fixed_size 0
  .amdhsa_kernarg_size 104
  .amdhsa_user_sgpr_count 2
  .amdhsa_user_sgpr_kernarg_segment_ptr 1
  .amdhsa_system_sgpr_workgroup_id_x 1
.end_amdhsa_kernel
"""
def build(out):
    hdr = open("cdna_kernels/" + NAME + ".s.ref").read().split("; Override launch")[0]
    s = hdr
    s += "; @launch kernel=k1_kernel grid=(256,1,1) block=(512,1,1) lds=163840\n"
    s += "; @launch kernel=k2_kernel grid=(240,1,1) block=(512,1,1) lds=163840\n"
    s += '.amdgcn_target "amdgcn-amd-amdhsa--gfx950"\n.text\n'
    for nm, f in (("k1_kernel", k1), ("k2_kernel", k2)):
        s += f".globl {nm}\n.p2align 8\n.type {nm},@function\n{nm}:\n" + f().text()
    s += '.section .rodata,"a"\n.p2align 6\n'
    s += kd("k1_kernel", 256) + ".p2align 6\n" + kd("k2_kernel", 256)
    open(out, "w").write(s)
if __name__ == "__main__":
    if len(sys.argv) > 2 and sys.argv[2] == "stamp": STAMP = True
    build(sys.argv[1])
```

```python
import sys, math, os, struct
from asmlib import *
NAME = "concat_heads__mha_block_cached__gqa_block_cached__near_ridge"
WS_O = 0
WS_P = 16 << 20
WS_F = 48 << 20
WS_STAMP = 64 << 20
SCALE_LOG2E = (128 ** -0.5) * math.log2(math.e)
def f32bits(x): return struct.unpack('<I', struct.pack('<f', x))[0]
def vr(b, n=4): return f"v[{b}:{b+n-1}]"
def env(k, d): return os.environ.get(k, d)
STAMP = False
ROT = env("ROT", "1") == "1"
ROT2 = env("ROT2", "1") == "1"
POL = {"0": "", "1": " nt", "2": " sc1", "3": " sc0 sc1", "4": " sc0"}
NT_W = POL[env("NT_W", "0")]
NT_X = POL[env("NT_X", "0")]
NT_KV = POL[env("NT_KV", "1")]
NT_WO = " nt" if env("NT_WO", "0") == "1" else ""
NT_PF = " nt" if env("NT_PF", "0") == "1" else ""
O_ST = env("O_ST", " sc0 sc1")
DIST = int(env("DIST", "2"))
DIST2 = int(env("DIST2", "2"))
KV_START = int(env("KV_START", "2"))
KV_END = int(env("KV_END", "9"))
PFWO = int(env("PFWO", "8"))
SLEEP = int(env("SLEEP", "4"))
SPIN_MAX = 200000
NCPF = 2
SX, SK, SV, SWQ, SWS, SWO, SOUT = 40, 44, 48, 52, 56, 60, 64
V_LANE, V_G, V_I16, V_RR, V_CC, V_F, V_T0, V_T1, V_T2, V_L16 = 1, 2, 3, 4, 5, 6, 7, 8, 9, 10

def srd(p, d, lo, hi, size):
    p(f"s_mov_b32 s{d}, s{lo}\ns_mov_b32 s{d+1}, s{hi}\ns_mov_b32 s{d+2}, {size}\ns_mov_b32 s{d+3}, 0x20000")
def srd_sel(p, d, a, b, size):
    p(f"s_cselect_b32 s{d}, s{a}, s{b}\ns_cselect_b32 s{d+1}, s{a+1}, s{b+1}\ns_mov_b32 s{d+2}, {size}\ns_mov_b32 s{d+3}, 0x20000")
def stamp(p, slot):
    if STAMP: p(f"s_memrealtime s[{80+2*slot}:{81+2*slot}]")
def stamp_end(p, kidx, vt):
    if STAMP and env("DBGSTAMP", "0") == "1" and kidx == 1:
        p("s_waitcnt vmcnt(0)")
        stamp(p, 6)
        p("s_waitcnt lgkmcnt(0)")
        p("s_lshl_b32 s96, s2, 2")
        p("s_or_b32 s96, s96, s3")
        p("s_cmp_lg_u32 s96, 308")
        p(f"s_cbranch_scc1 L_nost{kidx}")
        p(f"s_mov_b32 s68, s38\ns_mov_b32 s69, s39\ns_mov_b32 s70, 256\ns_mov_b32 s71, 0x20000")
        p(f"v_mov_b32 v{vt+8}, 0")
        p(f"s_mov_b32 s96, {WS_STAMP + 308*32}")
        p.raw(f"buffer_load_dwordx4 v[{vt+12}:{vt+15}], v{vt+8}, s[{SWS}:{SWS+3}], s96 offen")
        p.raw(f"buffer_load_dwordx4 v[{vt+16}:{vt+19}], v{vt+8}, s[{SWS}:{SWS+3}], s96 offen offset:16")
        for i in range(8):
            p.raw(f"v_mov_b32 v{vt+i}, s{80+2*i}")
        p.raw("s_waitcnt vmcnt(0)")
        p.raw(f"buffer_store_dwordx4 v[{vt+12}:{vt+15}], v{vt+8}, s[68:71], 0 offen")
        p.raw(f"buffer_store_dwordx4 v[{vt+16}:{vt+19}], v{vt+8}, s[68:71], 0 offen offset:16")
        p.raw(f"buffer_store_dwordx4 v[{vt}:{vt+3}], v{vt+8}, s[68:71], 0 offen offset:32")
        p.raw(f"buffer_store_dwordx4 v[{vt+4}:{vt+7}], v{vt+8}, s[68:71], 0 offen offset:48")
        p(f"L_nost{kidx}:")
        return
    if STAMP:
        p("s_waitcnt vmcnt(0)")
        stamp(p, 6)
        p("s_waitcnt lgkmcnt(0)")
        p(f"s_lshl_b32 s96, s2, 2\ns_add_u32 s96, s96, s3\ns_lshl_b32 s96, s96, 5\ns_add_u32 s96, s96, {WS_STAMP + kidx*65536}")
        for i in range(8): p(f"v_mov_b32 v{vt+i}, s{80+2*i}")
        p(f"""
        v_mov_b32 v{vt+8}, 0
        buffer_store_dwordx4 v[{vt}:{vt+3}], v{vt+8}, s[{SWS}:{SWS+3}], s96 offen
        buffer_store_dwordx4 v[{vt+4}:{vt+7}], v{vt+8}, s[{SWS}:{SWS+3}], s96 offen offset:16
        """)

def head(tag):
    p = Prog()
    p("s_cmp_ge_u32 s2, 256")
    p(f"s_cbranch_scc1 L_end_{tag}")
    if STAMP:
        for i in range(80, 96): p(f"s_mov_b32 s{i}, 0")
    stamp(p, 0)
    if STAMP: p("s_getreg_b32 s90, hwreg(HW_REG_XCC_ID)")
    p("""
    s_load_dwordx16 s[16:31], s[0:1], 0
    s_load_dwordx8 s[32:39], s[0:1], 64
    s_load_dwordx2 s[14:15], s[0:1], 96
    """)
    p(f"""
    v_and_b32 v{V_LANE}, 63, v0
    v_lshrrev_b32 v{V_T0}, 6, v0
    v_lshrrev_b32 v{V_G}, 4, v{V_LANE}
    v_readfirstlane_b32 s79, v{V_T0}
    v_and_b32 v{V_I16}, 15, v0
    v_bfe_u32 v{V_RR}, v0, 2, 2
    v_and_b32 v{V_CC}, 3, v0
    v_lshlrev_b32 v{V_L16}, 4, v{V_LANE}
    s_and_b32 s3, s79, 3
    s_and_b32 s4, s2, 7
    s_lshr_b32 s5, s2, 3
    s_lshr_b32 s6, s4, 2
    s_and_b32 s7, s4, 3
    s_lshr_b32 s8, s5, 2
    s_and_b32 s9, s5, 3
    """)
    p("s_waitcnt lgkmcnt(0)")
    p("s_cmp_eq_u32 s6, 0")
    if tag == "k1":
        srd_sel(p, SX, 16, 26, 983040)
        srd_sel(p, SK, 18, 28, 6291456)
        srd_sel(p, SV, 20, 30, 6291456)
        srd_sel(p, SWQ, 22, 32, 5242880)
    srd_sel(p, SWO, 24, 34, 5242880)
    srd(p, SWS, 14, 15, 0x10000000)
    if tag == "k2": srd(p, SOUT, 36, 37, 16*48*1280*2)
    p("""
    s_lshl_b32 s16, s7, 3
    s_add_u32 s16, s16, s8
    s_lshl_b32 s17, s9, 1
    s_lshr_b32 s10, s8, 2
    s_add_u32 s17, s17, s10
    s_and_b32 s18, s8, 3
    """)
    p("s_cmp_ge_u32 s79, 4")
    p(f"s_cbranch_scc1 L_loader_{tag}")
    return p

def k1():
    NSL = 4
    LX = 65536
    hd = head("k1")
    p = Prog()
    V_XR = 11; V_TR = 13; V_TV = 21; V_KR = 29
    T3 = 37
    FR = 40; ACC = 136; TMP = 232
    if env("CODEPF", "1") == "1":
        p("s_getpc_b64 s[30:31]")
        p("L_pc0:")
        p("s_mov_b32 s10, (L_code_end - L_pc0 - 4)")
        p(f"v_lshlrev_b32 v{TMP}, 7, v{V_LANE}")
        p(f"s_lshl_b32 s11, s3, 13")
        p(f"v_add_u32 v{TMP}, s11, v{TMP}")
        for i in range(NCPF):
            p(f"v_add_u32 v{TMP+1}, {i*32768}, v{TMP}")
            p(f"v_min_u32 v{TMP+1}, s10, v{TMP+1}")
            p(f"global_load_dword v{TMP+2+i}, v{TMP+1}, s[30:31]")
    p(f"""
    s_mul_i32 s10, s3, 24576
    s_add_u32 s77, s10, {LX}
    s_lshl_b32 s22, s9, 2
    s_add_u32 s22, s22, s3
    v_and_b32 v{V_T0}, 1, v{V_G}
    v_lshlrev_b32 v{V_T0}, 2, v{V_T0}
    v_or_b32 v{V_F}, v{V_RR}, v{V_T0}
    v_lshrrev_b32 v{V_T0}, 1, v{V_I16}
    v_xor_b32 v{V_T0}, v{V_T0}, v{V_G}
    v_lshlrev_b32 v{V_T1}, 7, v{V_I16}
    v_add_u32 v{V_T1}, s77, v{V_T1}
    v_lshl_add_u32 v{V_XR}, v{V_T0}, 4, v{V_T1}
    v_xor_b32 v{V_T0}, 4, v{V_T0}
    v_lshl_add_u32 v{V_XR+1}, v{V_T0}, 4, v{V_T1}
    v_lshl_add_u32 v{V_T0}, v{V_G}, 3, v{V_RR}
    v_lshlrev_b32 v{V_T0}, 8, v{V_T0}
    v_lshl_add_u32 v{V_T0}, v{V_CC}, 3, v{V_T0}
    v_lshl_add_u32 v{V_T1}, v{V_G}, 2, v{V_RR}
    v_lshlrev_b32 v{V_T1}, 8, v{V_T1}
    v_lshl_add_u32 v{V_T1}, v{V_CC}, 3, v{V_T1}
    v_add_u32 v{V_T1}, s77, v{V_T1}
    """)
    for t in range(8):
        p(f"""
        v_xor_b32 v{TMP}, {t}, v{V_F}
        v_lshl_add_u32 v{V_TR+t}, v{TMP}, 5, v{V_T0}
        v_lshl_add_u32 v{V_TV+t}, v{TMP}, 5, v{V_T1}
        """)
    p(f"""
    v_lshrrev_b32 v{V_T0}, 1, v{V_G}
    v_xor_b32 v{V_T0}, v{V_T0}, v{V_I16}
    v_and_b32 v{V_T1}, 1, v{V_G}
    v_lshlrev_b32 v{V_T1}, 3, v{V_T1}
    v_lshl_add_u32 v{V_T1}, v{V_I16}, 8, v{V_T1}
    v_add_u32 v{V_T1}, s77, v{V_T1}
    """)
    for j in range(8):
        p(f"""
        v_xor_b32 v{TMP}, {2*j}, v{V_T0}
        v_lshl_add_u32 v{V_KR+j}, v{TMP}, 4, v{V_T1}
        """)
    p(f"""
    s_mul_i32 s10, s6, 48
    s_mul_i32 s11, s22, 3
    s_add_u32 s10, s10, s11
    s_lshl_b32 s10, s10, 7
    s_lshl_b32 s11, s16, 2
    s_add_u32 s10, s10, s11
    s_lshl_b32 s24, s10, 10
    s_add_u32 s25, s24, 131072
    s_add_u32 s26, s24, 262144
    s_mov_b32 s98, {f32bits(SCALE_LOG2E)}
    """)
    def run(items):
        for x in items:
            if callable(x): x()
            else: p(x)
    def reads(s):
        c, ks = s // 2, s % 2
        it = []
        fb = FR + (s % 2) * 44
        for u in range(3):
            it.append(f"ds_read_b128 {vr(fb + 32 + u*4)}, v{V_XR + ks} offset:{(c % NSL)*6144 + u*2048}")
        off0 = (c % NSL) * 16384 + ks * 8192
        for t in range(8):
            for hf in range(2):
                it.append(f"ds_read_b64_tr_b16 {vr(fb + t*4 + 2*hf, 2)}, v{V_TR+t} offset:{off0 + hf*1024}")
        return it
    def mfmas(s, order_u=False):
        it = []
        fb = FR + (s % 2) * 44
        idx = [(t, u) for u in range(3) for t in range(8)] if order_u else [(t, u) for t in range(8) for u in range(3)]
        for t, u in idx:
            a = ACC + (t*3+u)*4
            c = "0" if s == 0 else vr(a)
            it.append(f"v_mfma_f32_16x16x32_bf16 {vr(a)}, {vr(fb + t*4)}, {vr(fb + 32 + u*4)}, {c}")
        return it
    def KF(i): return 40 + 4*i if i < 11 else 128
    def QF(i): return 84 + 4*i if i < 11 else 132
    kreads = [f"ds_read_b64 {vr(KF(kt*4+T) + 2*hf, 2)}, v{V_KR + 2*T + hf} offset:{12288 + kt*4096}" for kt in range(3) for T in range(4) for hf in range(2)]
    p("s_barrier")
    stamp(p, 1)
    run(reads(0))
    for s in range(20):
        if s % 2 == 1:
            p.wait_lg(0)
            p("s_barrier")
        side = reads(s + 1) if s < 19 else []
        interleave(p, mfmas(s, order_u=(s == 19)), side, ratio=1)
    stamp(p, 2)
    ST = ACC
    VF = ACC + 40
    PFR = TMP
    AO = 40
    def cvtq(u):
        it = []
        for T in range(4):
            for k in range(4):
                a = ACC + ((2*T + k//2)*3 + u)*4 + 2*(k%2)
                it.append(f"v_cvt_pk_bf16_f32 v{QF(T*3+u) + k}, v{a}, v{a+1}")
        return it
    def st(u):
        it = []
        for T in range(4):
            for kt in range(3):
                d = ST + (kt*3+u)*4
                c = "0" if T == 0 else vr(d)
                it.append(f"v_mfma_f32_16x16x32_bf16 {vr(d)}, {vr(KF(kt*4+T))}, {vr(QF(T*3+u))}, {c}")
        return it
    def sm(u):
        it = []
        vals = [ST + (kt*3+u)*4 + r for kt in range(3) for r in range(4)]
        m, t2, sm_ = T3, T3+1, T3+2
        it.append(f"v_max3_f32 v{m}, v{vals[0]}, v{vals[1]}, v{vals[2]}")
        it.append(f"v_max3_f32 v{t2}, v{vals[3]}, v{vals[4]}, v{vals[5]}")
        it.append(f"v_max3_f32 v{m}, v{m}, v{vals[6]}, v{vals[7]}")
        it.append(f"v_max3_f32 v{t2}, v{t2}, v{vals[8]}, v{vals[9]}")
        it.append(f"v_max3_f32 v{m}, v{m}, v{vals[10]}, v{vals[11]}")
        it.append(f"v_max_f32 v{m}, v{m}, v{t2}")
        it += [f"v_mov_b32 v{t2}, v{m}", f"v_permlane16_swap_b32 v{m}, v{t2}", f"v_max_f32 v{m}, v{m}, v{t2}",
               f"v_mov_b32 v{t2}, v{m}", f"v_permlane32_swap_b32 v{m}, v{t2}", f"v_max_f32 v{m}, v{m}, v{t2}",
               f"v_mul_f32 v{m}, s98, v{m}"]
        for v in vals: it.append(f"v_fma_f32 v{v}, v{v}, s98, -v{m}")
        for v in vals: it.append(f"v_exp_f32 v{v}, v{v}")
        it.append(f"v_add_f32 v{sm_}, v{vals[0]}, v{vals[1]}")
        it.append(f"v_add_f32 v{t2}, v{vals[2]}, v{vals[3]}")
        for i in range(4, 12, 2):
            it.append(f"v_add_f32 v{sm_}, v{sm_}, v{vals[i]}")
            it.append(f"v_add_f32 v{t2}, v{t2}, v{vals[i+1]}")
        it.append(f"v_add_f32 v{sm_}, v{sm_}, v{t2}")
        it += [f"v_mov_b32 v{t2}, v{sm_}", f"v_permlane16_swap_b32 v{sm_}, v{t2}", f"v_add_f32 v{sm_}, v{sm_}, v{t2}",
               f"v_mov_b32 v{t2}, v{sm_}", f"v_permlane32_swap_b32 v{sm_}, v{t2}", f"v_add_f32 v{sm_}, v{sm_}, v{t2}",
               f"v_rcp_f32 v{sm_}, v{sm_}"]
        for v in vals: it.append(f"v_mul_f32 v{v}, v{v}, v{sm_}")
        for i in range(6): it.append(f"v_cvt_pk_bf16_f32 v{PFR + u*8 + i}, v{vals[2*i]}, v{vals[2*i+1]}")
        return it
    def pv(u):
        it = []
        for t in range(8):
            d = AO + (t*3+u)*4
            it.append(f"v_mfma_f32_16x16x32_bf16 {vr(d)}, {vr(VF + t*6)}, {vr(PFR + u*8)}, 0")
        for t in range(8):
            d = AO + (t*3+u)*4
            it.append(f"v_mfma_f32_16x16x16_bf16 {vr(d)}, {vr(VF + t*6 + 4, 2)}, {vr(PFR + u*8 + 4, 2)}, {vr(d)}")
        return it
    def cvto(u):
        it = []
        for T in range(4):
            r0 = AO + ((2*T)*3 + u)*4
            r1 = AO + ((2*T+1)*3 + u)*4
            it += [f"v_cvt_pk_bf16_f32 v{r0}, v{r0}, v{r0+1}", f"v_cvt_pk_bf16_f32 v{r0+1}, v{r0+2}, v{r0+3}",
                   f"v_cvt_pk_bf16_f32 v{r0+2}, v{r1}, v{r1+1}", f"v_cvt_pk_bf16_f32 v{r0+3}, v{r1+2}, v{r1+3}",
                   f"buffer_store_dwordx4 {vr(r0)}, v{V_L16}, s[{SWS}:{SWS+3}], s{24+u} offen offset:{T*1024}{O_ST}"]
        return it
    vreads = [f"ds_read_b64_tr_b16 {vr(VF + t*6 + 2*kp, 2)}, v{V_TV+t} offset:{kp*4096}" for t in range(8) for kp in range(3)]
    run(cvtq(0))
    p("s_barrier")
    stamp(p, 3)
    interleave(p, kreads, cvtq(1) + cvtq(2), ratio=2)
    run(st(0))
    s0 = sm(0)
    interleave(p, st(1) + st(2), s0, ratio=3, start=2)
    p("s_barrier")
    stamp(p, 4)
    s1 = sm(1)
    interleave(p, vreads, s1[:24], ratio=1)
    interleave(p, pv(0), s1[24:], ratio=4)
    interleave(p, pv(1), sm(2) , ratio=5)
    run(cvto(0))
    interleave(p, pv(2), cvto(1), ratio=2)
    run(cvto(2))
    stamp_end(p, 0, 136)
    p("s_endpgm")
    comp = p

    p = Prog()
    p("L_loader_k1:")
    p("s_cmp_ge_u32 s79, 6")
    p("s_cbranch_scc1 L_kv")
    V_DA, V_DB, V_XD, V_PF = 11, 12, 13, 16
    p(f"""
    s_and_b32 s23, s79, 1
    v_lshlrev_b32 v{V_T0}, 1, v{V_G}
    v_xor_b32 v{V_T0}, v{V_T0}, v{V_I16}
    v_lshlrev_b32 v{V_T0}, 4, v{V_T0}
    v_lshl_add_u32 v{V_DA}, v{V_G}, 13, v{V_T0}
    v_xor_b32 v{V_DB}, 0x80, v{V_DA}
    v_lshrrev_b32 v{V_T0}, 3, v{V_LANE}
    v_mul_u32_u24 v{V_T0}, 1280, v{V_T0}
    v_and_b32 v{V_T1}, 7, v{V_LANE}
    v_xor_b32 v{V_T1}, v{V_T1}, v{V_G}
    v_lshl_add_u32 v{V_XD}, v{V_T1}, 4, v{V_T0}
    v_xor_b32 v{V_T1}, 4, v{V_T1}
    v_lshl_add_u32 v{V_XD+1}, v{V_T1}, 4, v{V_T0}
    s_lshl_b32 s24, s16, 8
    s_lshl_b32 s10, s23, 18
    s_add_u32 s24, s24, s10
    s_lshl_b32 s25, s23, 13
    s_lshl_b32 s22, s9, 2
    s_lshl_b32 s10, s23, 1
    s_add_u32 s22, s22, s10
    s_mul_i32 s26, s22, 61440
    s_mul_i32 s77, s23, 49152
    s_add_u32 s77, s77, {LX}
    s_mul_i32 s10, s9, 5
    s_lshr_b32 s10, s10, 1
    s_mul_i32 s11, s8, 5
    s_lshr_b32 s11, s11, 2
    s_add_u32 s72, s10, s11
    s_cmp_ge_u32 s72, 10
    s_cselect_b32 s10, 10, 0
    s_sub_u32 s72, s72, s10
    """)
    if not ROT: p("s_mov_b32 s72, 0")
    def chunk_loads(c):
        if c > 0:
            p("s_add_u32 s72, s72, 1\ns_cmp_ge_u32 s72, 10\ns_cselect_b32 s10, 10, 0\ns_sub_u32 s72, s72, s10")
        p("s_lshl_b32 s73, s72, 19\ns_add_u32 s73, s73, s24\ns_lshl_b32 s74, s72, 7\ns_add_u32 s74, s74, s26")
        for i in range(8):
            p(f"s_add_u32 m0, s25, {(c % NSL)*16384 + i*1024}")
            p(f"s_add_u32 s97, s73, {(4*i) * 8192}")
            p(f"buffer_load_dwordx4 v{V_DA if (i % 4) < 2 else V_DB}, s[{SWQ}:{SWQ+3}], s97 offen{NT_W} lds", tag=f"c{c}")
        for ww in range(2):
            for j in range(6):
                p(f"s_add_u32 m0, s77, {ww*24576 + (c % NSL)*6144 + j*1024}")
                p(f"s_add_u32 s97, s74, {ww*61440 + j * 10240}")
                p(f"buffer_load_dwordx4 v{V_XD + j % 2}, s[{SX}:{SX+3}], s97 offen{NT_X} lds", tag=f"c{c}")
    def pf_wo():
        p(f"""
        s_lshl_b32 s10, s5, 1
        s_add_u32 s10, s10, s23
        s_lshl_b32 s11, s7, 6
        s_add_u32 s10, s10, s11
        s_mul_i32 s75, s10, 20480
        v_lshlrev_b32 v{V_PF}, 7, v{V_LANE}
        v_add_u32 v{V_PF+1}, 8192, v{V_PF}
        v_add_u32 v{V_PF+2}, 16384, v{V_PF}
        v_cmp_lt_u32 vcc, 31, v{V_LANE}
        v_cndmask_b32 v{V_PF+2}, v{V_PF+2}, -1, vcc
        buffer_load_dword v{V_PF+4}, v{V_PF}, s[{SWO}:{SWO+3}], s75 offen{NT_PF}
        buffer_load_dword v{V_PF+5}, v{V_PF+1}, s[{SWO}:{SWO+3}], s75 offen{NT_PF}
        buffer_load_dword v{V_PF+6}, v{V_PF+2}, s[{SWO}:{SWO+3}], s75 offen{NT_PF}
        """)
    p(f"""
    s_lshl_b32 s10, s2, 7
    s_add_u32 s10, s10, {WS_F}
    v_mov_b32 v{V_PF}, 0
    buffer_store_dword v{V_PF}, v{V_PF}, s[{SWS}:{SWS+3}], s10 offen
    """)
    for c in range(DIST): chunk_loads(c)
    for c in range(10):
        p.wait_tag(f"c{c}"); p("s_barrier")
        if c + DIST < 10: chunk_loads(c + DIST)
        if c == PFWO: pf_wo()
    p("s_barrier")
    if PFWO == 10: pf_wo()
    p("s_endpgm")
    load1 = p
    p = Prog()
    p("L_kv:")
    V_VA, V_VB, V_WR, V_KD = 11, 12, 13, 14
    RS = 32
    p(f"""
    s_and_b32 s23, s79, 1
    v_lshlrev_b32 v{V_T0}, 1, v{V_G}
    v_xor_b32 v{V_T0}, v{V_T0}, v{V_I16}
    v_lshlrev_b32 v{V_T0}, 4, v{V_T0}
    v_lshl_add_u32 v{V_VA}, v{V_G}, 8, v{V_T0}
    v_xor_b32 v{V_VB}, 0x80, v{V_VA}
    s_mul_i32 s77, s23, 49152
    s_add_u32 s77, s77, {LX}
    v_add_u32 v{V_WR}, s77, v{V_L16}
    v_xor_b32 v{V_T0}, v{V_G}, v{V_I16}
    v_lshlrev_b32 v{V_T0}, 4, v{V_T0}
    v_lshl_add_u32 v{V_KD}, v{V_G}, 8, v{V_T0}
    v_xor_b32 v{V_KD+1}, 0x40, v{V_KD}
    v_xor_b32 v{V_KD+2}, 0x80, v{V_KD}
    v_xor_b32 v{V_KD+3}, 0xc0, v{V_KD}
    s_lshl_b32 s22, s9, 2
    s_lshl_b32 s10, s23, 1
    s_add_u32 s22, s22, s10
    s_lshl_b32 s10, s22, 5
    s_add_u32 s10, s10, s16
    s_mul_i32 s24, s10, 12288
    s_add_u32 s25, s24, 4096
    s_add_u32 s26, s24, 8192
    s_add_u32 s27, s24, 393216
    s_add_u32 s28, s27, 4096
    s_add_u32 s29, s27, 8192
    """)
    kv = []
    for ww in range(2):
        kv += [f"buffer_load_dwordx4 {vr(RS + ww*96 + i*4)}, v{V_KD + i % 4}, s[{SK}:{SK+3}], s{24 + 3*ww + i//4} offen offset:{(i%4)*1024}{NT_KV}" for i in range(12)]
    for ww in range(2):
        kv += [f"buffer_load_dwordx4 {vr(RS + ww*96 + 48 + i*4)}, v{V_VA if i % 2 == 0 else V_VB}, s[{SV}:{SV+3}], s{24 + 3*ww + i//4} offen offset:{(i%4)*1024}{NT_KV}" for i in range(12)]
    nb = KV_END - KV_START
    per = (len(kv) + nb - 1) // nb
    for c in range(-1, 11):
        if c >= 0: p("s_barrier")
        if c >= KV_START:
            for x in kv[:per]: p(x)
            kv = kv[per:]
    for x in kv: p(x)
    for ww in range(2):
        for i in range(12):
            p(f"ds_write_b128 v{V_WR}, {vr(RS + ww*96 + i*4)} offset:{ww*24576 + 12288 + i*1024}")
    p.wait_lg(0)
    p("s_barrier")
    for ww in range(2):
        for i in range(12):
            p(f"ds_write_b128 v{V_WR}, {vr(RS + ww*96 + 48 + i*4)} offset:{ww*24576 + i*1024}")
    p.wait_lg(0)
    p("s_barrier")
    p("L_end_k1:")
    p("s_endpgm")
    load2 = p
    for q in (hd, comp, load1, load2): q.finalize()
    hd.ins = hd.ins + comp.ins + load1.ins + load2.ins
    return hd

def k2():
    NS = 5
    p = Prog()
    p("s_cmp_ge_u32 s2, 240")
    p("s_cbranch_scc1 L_end_k2")
    if STAMP:
        for i in range(80, 96): p(f"s_mov_b32 s{i}, 0")
    stamp(p, 0)
    p("""
    s_load_dwordx2 s[24:25], s[0:1], 32
    s_load_dwordx2 s[34:35], s[0:1], 72
    s_load_dwordx2 s[36:37], s[0:1], 80
    s_load_dwordx2 s[14:15], s[0:1], 96
    """)
    if STAMP: p("s_load_dwordx2 s[38:39], s[0:1], 88")
    p(f"""
    v_and_b32 v{V_LANE}, 63, v0
    v_lshrrev_b32 v{V_T0}, 6, v0
    v_lshrrev_b32 v{V_G}, 4, v{V_LANE}
    v_readfirstlane_b32 s79, v{V_T0}
    v_and_b32 v{V_I16}, 15, v0
    v_lshlrev_b32 v{V_L16}, 4, v{V_LANE}
    s_and_b32 s4, s2, 7
    s_lshr_b32 s5, s2, 3
    s_lshr_b32 s6, s4, 2
    s_and_b32 s7, s4, 3
    s_mul_i32 s17, s5, 13
    s_lshr_b32 s17, s17, 6
    s_mul_i32 s10, s17, 5
    s_sub_u32 s18, s5, s10
    s_and_b32 s3, s79, 3
    """)
    p("s_waitcnt lgkmcnt(0)")
    p("s_cmp_eq_u32 s6, 0")
    srd_sel(p, SWO, 24, 34, 5242880)
    srd(p, SWS, 14, 15, 0x10000000)
    srd(p, SOUT, 36, 37, 16*48*1280*2)
    p("s_cmp_ge_u32 s79, 4")
    p("s_cbranch_scc1 L_loader_k2")
    hd = p
    p = Prog()
    V_A = 11
    V_B = 23
    V_OUT = 26
    FR2 = 32; ACC2 = 96; D = 160
    p(f"""
    v_bfe_u32 v{V_RR}, v0, 2, 2
    v_and_b32 v{V_CC}, 3, v0
    s_lshr_b32 s10, s3, 1
    s_and_b32 s11, s3, 1
    v_and_b32 v{V_T0}, 1, v{V_G}
    v_lshlrev_b32 v{V_T0}, 2, v{V_T0}
    v_or_b32 v{V_F}, v{V_RR}, v{V_T0}
    v_lshl_add_u32 v{V_T0}, v{V_G}, 2, v{V_RR}
    v_lshlrev_b32 v{V_T0}, 8, v{V_T0}
    v_lshl_add_u32 v{V_T0}, v{V_CC}, 3, v{V_T0}
    s_lshl_b32 s13, s11, 2
    """)
    for tt in range(4):
        p(f"""
        s_add_u32 s12, s13, {tt}
        v_xor_b32 v{V_T2}, s12, v{V_F}
        v_lshl_add_u32 v{V_A+tt}, v{V_T2}, 5, v{V_T0}
        v_add_u32 v{V_A+4+tt}, 0x10000, v{V_A+tt}
        v_add_u32 v{V_A+8+tt}, 0x20000, v{V_A+tt}
        """)
    p(f"""
    s_lshl_b32 s13, s10, 13
    v_add_u32 v{V_B}, s13, v{V_L16}
    v_add_u32 v{V_B+1}, 0x10000, v{V_B}
    v_add_u32 v{V_B+2}, 0x20000, v{V_B}
    v_mul_u32_u24 v{V_OUT}, 2560, v{V_I16}
    v_lshl_add_u32 v{V_OUT}, v{V_G}, 3, v{V_OUT}
    s_mul_i32 s13, s6, 30
    s_add_u32 s13, s13, s5
    s_lshl_b32 s13, s13, 4
    s_add_u32 s13, s13, s3
    s_lshl_b32 s27, s13, 14
    s_add_u32 s27, s27, {WS_P}
    s_lshl_b32 s12, s7, 16
    s_add_u32 s28, s27, s12
    s_lshl_b32 s13, s17, 7
    s_lshl_b32 s12, s10, 6
    s_add_u32 s13, s13, s12
    s_mul_i32 s29, s13, 2560
    s_mul_i32 s13, s6, 1280
    s_add_u32 s29, s29, s13
    s_lshl_b32 s13, s18, 8
    s_add_u32 s29, s29, s13
    s_lshl_b32 s13, s11, 7
    s_add_u32 s29, s29, s13
    s_lshl_b32 s13, s7, 5
    s_add_u32 s29, s29, s13
    """)
    def run(items):
        for x in items:
            if callable(x): x()
            else: p(x)
    def reads2(s):
        c, ks = s // 2, s % 2
        base = (c % NS) * 32768
        fb = FR2 + (s % 2) * 32
        it = []
        for u in range(4):
            off = base + (u*2 + ks) * 1024
            it.append(f"ds_read_b128 {vr(fb + 16 + u*4)}, v{V_B + off // 65536} offset:{off % 65536}")
        for tt in range(4):
            for hf in range(2):
                off = base + 16384 + ks*8192 + hf*4096
                it.append(f"ds_read_b64_tr_b16 {vr(fb + tt*4 + 2*hf, 2)}, v{V_A + 4*(off // 65536) + tt} offset:{off % 65536}")
        return it
    def mfmas2(s):
        fb = FR2 + (s % 2) * 32
        it = []
        for tt in range(4):
            for u in range(4):
                a = ACC2 + (tt*4+u)*4
                c = "0" if s == 0 else vr(a)
                it.append(f"v_mfma_f32_16x16x32_bf16 {vr(a)}, {vr(fb + tt*4)}, {vr(fb + 16 + u*4)}, {c}")
        return it
    p("s_barrier")
    stamp(p, 1)
    run(reads2(0))
    for s in range(32):
        if s % 2 == 1 and s < 31: p("s_barrier")
        side = reads2(s + 1) if s < 31 else []
        interleave(p, mfmas2(s), side, ratio=1)
    stamp(p, 2)
    p("s_nop 15")
    P16 = env("P16", "1") == "1"
    for q in range(4):
        p(f"s_cmp_eq_u32 s7, {q}")
        p(f"s_cbranch_scc1 L_skipq{q}")
        p(f"s_add_u32 s30, s28, {q*4096}")
        if P16:
            for i2 in range(2):
                a = ACC2 + (4*q + 2*i2)*4
                p.raw(f"v_cvt_pk_bf16_f32 v{a}, v{a}, v{a+1}")
                p.raw(f"v_cvt_pk_bf16_f32 v{a+1}, v{a+2}, v{a+3}")
                p.raw(f"v_cvt_pk_bf16_f32 v{a+2}, v{a+4}, v{a+5}")
                p.raw(f"v_cvt_pk_bf16_f32 v{a+3}, v{a+6}, v{a+7}")
                p.raw(f"buffer_store_dwordx4 {vr(a)}, v{V_L16}, s[{SWS}:{SWS+3}], s30 offen offset:{i2*1024} sc1")
        else:
            for i in range(4):
                p.raw(f"buffer_store_dwordx4 {vr(ACC2 + (4*q+i)*4)}, v{V_L16}, s[{SWS}:{SWS+3}], s30 offen offset:{i*1024} sc1")
        p(f"s_branch L_nown{q}")
        p(f"L_skipq{q}:")
        for i in range(16):
            p.raw(f"v_mov_b32 v{FR2 + i}, v{ACC2 + 16*q + i}")
        p(f"L_nown{q}:")
    p("s_waitcnt vmcnt(0)")
    stamp(p, 3)
    p("s_barrier")
    p("s_barrier")
    stamp(p, 4)
    p("s_lshl_b32 s31, s7, 12")
    p("s_add_u32 s31, s31, s27")
    nl = 2 if P16 else 4
    for jj in range(3):
        p(f"s_add_u32 s30, s7, {jj+1}\ns_and_b32 s30, s30, 3\ns_lshl_b32 s30, s30, 16\ns_add_u32 s30, s30, s31")
        for i in range(nl):
            p(f"buffer_load_dwordx4 {vr(D + (jj*4+i)*4)}, v{V_L16}, s[{SWS}:{SWS+3}], s30 offen offset:{i*1024} sc1")
    p("s_mov_b32 s13, 0xffff0000")
    for i in range(4):
        b0 = FR2 + i*4
        if P16:
            T = ACC2
            for jj in range(3):
                src = D + (jj*4 + i//2)*4 + 2*(i % 2)
                for h in range(2):
                    p(f"v_lshlrev_b32 v{T}, 16, v{src+h}")
                    p(f"v_and_b32 v{T+1}, s13, v{src+h}")
                    p(f"v_add_f32 v{b0+2*h}, v{b0+2*h}, v{T}")
                    p(f"v_add_f32 v{b0+2*h+1}, v{b0+2*h+1}, v{T+1}")
            b1 = ACC2 + 4 + 2*i
        else:
            b1, b2, b3 = [D + (j*4+i)*4 for j in range(3)]
            for r in range(4):
                p(f"v_add_f32 v{b0+r}, v{b0+r}, v{b1+r}")
                p(f"v_add_f32 v{b2+r}, v{b2+r}, v{b3+r}")
                p(f"v_add_f32 v{b0+r}, v{b0+r}, v{b2+r}")
        p(f"v_cvt_pk_bf16_f32 v{b1}, v{b0}, v{b0+1}")
        p(f"v_cvt_pk_bf16_f32 v{b1+1}, v{b0+2}, v{b0+3}")
        p(f"s_add_u32 s30, s29, {i*40960}")
        p(f"buffer_store_dwordx2 {vr(b1, 2)}, v{V_OUT}, s[{SOUT}:{SOUT+3}], s30 offen")
    stamp_end(p, 1, 60)
    p("s_endpgm")
    comp = p
    p = Prog()
    p("L_loader_k2:")
    V_WA, V_WB, V_FL, V_FD = 11, 12, 16, 18
    p(f"""
    s_mul_i32 s13, s6, 48
    s_lshl_b32 s12, s17, 3
    s_add_u32 s13, s13, s12
    s_lshl_b32 s12, s3, 1
    s_add_u32 s13, s13, s12
    s_lshl_b32 s13, s13, 7
    s_lshl_b32 s12, s7, 5
    s_add_u32 s13, s13, s12
    s_lshl_b32 s24, s13, 10
    s_lshl_b32 s25, s3, 12
    """)
    def dma_o(c):
        slot = c % NS
        if "o" in env("SKIP2", ""): return
        for i in range(2):
            for ks in range(2):
                p(f"s_add_u32 m0, s25, {slot*32768 + (i*2+ks)*1024}")
                p(f"s_add_u32 s97, s24, {WS_O + i*131072 + (2*c+ks)*1024}")
                p(f"buffer_load_dwordx4 v{V_L16}, s[{SWS}:{SWS+3}], s97 offen lds", tag=f"c{c}")
    def dma_w(c):
        slot = c % NS
        if "w" in env("SKIP2", ""): return
        for i in range(4):
            p(f"s_add_u32 m0, s27, {slot*32768 + i*1024}")
            p(f"s_add_u32 s97, s26, {(64*c + 4*i)*1280}")
            p(f"buffer_load_dwordx4 v{V_WA if i % 2 == 0 else V_WB}, s[{SWO}:{SWO+3}], s97 offen{NT_WO} lds", tag=f"c{c}")
    dma_o(0)
    p(f"""
    v_lshlrev_b32 v{V_T0}, 1, v{V_G}
    v_xor_b32 v{V_T0}, v{V_T0}, v{V_I16}
    v_lshlrev_b32 v{V_T0}, 4, v{V_T0}
    v_mul_u32_u24 v{V_T1}, 1280, v{V_G}
    v_add_u32 v{V_WA}, v{V_T0}, v{V_T1}
    v_xor_b32 v{V_T0}, 0x80, v{V_T0}
    v_add_u32 v{V_WB}, v{V_T0}, v{V_T1}
    s_lshl_b32 s13, s7, 10
    s_lshl_b32 s12, s3, 4
    s_add_u32 s13, s13, s12
    s_mul_i32 s13, s13, 1280
    s_lshl_b32 s12, s18, 8
    s_add_u32 s26, s13, s12
    s_lshl_b32 s27, s3, 12
    s_add_u32 s27, s27, 16384
    """)
    dma_w(0)
    nxt = 1
    for c in range(1, DIST2): dma_o(c); dma_w(c); nxt += 1
    p(f"""
    s_lshl_b32 s10, s2, 7
    s_add_u32 s10, s10, {WS_F}
    v_mov_b32 v{V_FL}, s10
    s_and_b32 s10, s2, 0xfc
    s_lshl_b32 s10, s10, 7
    s_add_u32 s10, s10, {WS_F}
    v_and_b32 v{V_T0}, 3, v{V_LANE}
    v_lshlrev_b32 v{V_T0}, 7, v{V_T0}
    v_add_u32 v{V_FL+1}, s10, v{V_T0}
    """)
    for c in range(16):
        p.wait_tag(f"c{c}"); p("s_barrier")
        if nxt <= min(15, c + DIST2): dma_o(nxt); dma_w(nxt); nxt += 1
    p("s_cmp_lg_u32 s79, 4")
    p("s_cbranch_scc1 L_end_k2")
    p.raw("s_barrier")
    p.raw(f"v_mov_b32 v{V_FD}, 1")
    p.raw(f"buffer_store_dword v{V_FD}, v{V_FL}, s[{SWS}:{SWS+3}], 0 offen sc1")
    p.raw(f"s_mov_b32 s76, {SPIN_MAX}")
    p.raw("L_poll2:")
    p.raw(f"buffer_load_dword v{V_FD}, v{V_FL+1}, s[{SWS}:{SWS+3}], 0 offen sc1")
    p.raw("s_waitcnt vmcnt(0)")
    p.raw(f"v_cmp_ne_u32 vcc, 1, v{V_FD}")
    p.raw("s_nop 4")
    p.raw("s_cmp_eq_u64 vcc, 0")
    p.raw("s_cbranch_scc1 L_done2")
    p.raw(f"s_sleep {SLEEP}")
    p.raw("s_sub_u32 s76, s76, 1")
    p.raw("s_cmp_lg_u32 s76, 0")
    p.raw("s_cbranch_scc1 L_poll2")
    p.raw("L_done2:")
    p.raw("s_barrier")
    p("L_end_k2:")
    p("s_endpgm")
    p("L_code_end:")
    load = p
    for q in (hd, comp, load): q.finalize()
    hd.ins = hd.ins + comp.ins + load.ins
    return hd

def kd(name, vgpr, sgpr=100):
    return f""".amdhsa_kernel {name}
  .amdhsa_next_free_vgpr {vgpr}
  .amdhsa_next_free_sgpr {sgpr}
  .amdhsa_accum_offset {vgpr}
  .amdhsa_group_segment_fixed_size 0
  .amdhsa_kernarg_size 104
  .amdhsa_user_sgpr_count 2
  .amdhsa_user_sgpr_kernarg_segment_ptr 1
  .amdhsa_system_sgpr_workgroup_id_x 1
.end_amdhsa_kernel
"""
def build(out):
    hdr = open("cdna_kernels/" + NAME + ".s.ref").read().split("; Override launch")[0]
    s = hdr
    s += "; @launch kernel=k1_kernel grid=(256,1,1) block=(512,1,1) lds=163840\n"
    s += "; @launch kernel=k2_kernel grid=(240,1,1) block=(512,1,1) lds=163840\n"
    s += '.amdgcn_target "amdgcn-amd-amdhsa--gfx950"\n.text\n'
    for nm, f in (("k1_kernel", k1), ("k2_kernel", k2)):
        s += f".globl {nm}\n.p2align 8\n.type {nm},@function\n{nm}:\n" + f().text()
    s += '.section .rodata,"a"\n.p2align 6\n'
    s += kd("k1_kernel", 256) + ".p2align 6\n" + kd("k2_kernel", 256)
    open(out, "w").write(s)
if __name__ == "__main__":
    if len(sys.argv) > 2 and sys.argv[2] == "stamp": STAMP = True
    build(sys.argv[1])
```

```python
import sys, math, os, struct
from asmlib import *
NAME = "concat_heads__mha_block_cached__gqa_block_cached__near_ridge"
WS_O = 0
WS_P = 16 << 20
WS_F = 48 << 20
WS_STAMP = 64 << 20
SCALE_LOG2E = (128 ** -0.5) * math.log2(math.e)
def f32bits(x): return struct.unpack('<I', struct.pack('<f', x))[0]
def vr(b, n=4): return f"v[{b}:{b+n-1}]"
def env(k, d): return os.environ.get(k, d)
STAMP = False
ROTM = env("ROT", "1")
ROT = ROTM != "0"
ROT2 = env("ROT2", "1") == "1"
POL = {"0": "", "1": " nt", "2": " sc1", "3": " sc0 sc1", "4": " sc0"}
NT_W = POL[env("NT_W", "0")]
NT_X = POL[env("NT_X", "0")]
NT_KV = POL[env("NT_KV", "1")]
NT_WO = " nt" if env("NT_WO", "0") == "1" else ""
NT_PF = " nt" if env("NT_PF", "0") == "1" else ""
O_ST = env("O_ST", " sc0 sc1")
DIST = int(env("DIST", "2"))
DIST2 = int(env("DIST2", "2"))
KV_START = int(env("KV_START", "2"))
KV_END = int(env("KV_END", "9"))
PFWO = int(env("PFWO", "8"))
SLEEP = int(env("SLEEP", "4"))
SPIN_MAX = 200000
NCPF = 2
NPF = int(env('NPF', '16'))
TOUCH = env('TOUCH', '0') == '1'
SX, SK, SV, SWQ, SWS, SWO, SOUT = 40, 44, 48, 52, 56, 60, 64
V_LANE, V_G, V_I16, V_RR, V_CC, V_F, V_T0, V_T1, V_T2, V_L16 = 1, 2, 3, 4, 5, 6, 7, 8, 9, 10

def srd(p, d, lo, hi, size):
    p(f"s_mov_b32 s{d}, s{lo}\ns_mov_b32 s{d+1}, s{hi}\ns_mov_b32 s{d+2}, {size}\ns_mov_b32 s{d+3}, 0x20000")
def srd_sel(p, d, a, b, size):
    p(f"s_cselect_b32 s{d}, s{a}, s{b}\ns_cselect_b32 s{d+1}, s{a+1}, s{b+1}\ns_mov_b32 s{d+2}, {size}\ns_mov_b32 s{d+3}, 0x20000")
def stamp(p, slot):
    if STAMP: p(f"s_memrealtime s[{80+2*slot}:{81+2*slot}]")
def stamp_end(p, kidx, vt):
    if STAMP and env("DBGSTAMP", "0") == "1" and kidx == 1:
        p("s_waitcnt vmcnt(0)")
        stamp(p, 6)
        p("s_waitcnt lgkmcnt(0)")
        p("s_lshl_b32 s96, s2, 2")
        p("s_or_b32 s96, s96, s3")
        p("s_cmp_lg_u32 s96, 308")
        p(f"s_cbranch_scc1 L_nost{kidx}")
        p(f"s_mov_b32 s68, s38\ns_mov_b32 s69, s39\ns_mov_b32 s70, 256\ns_mov_b32 s71, 0x20000")
        p(f"v_mov_b32 v{vt+8}, 0")
        p(f"s_mov_b32 s96, {WS_STAMP + 308*32}")
        p.raw(f"buffer_load_dwordx4 v[{vt+12}:{vt+15}], v{vt+8}, s[{SWS}:{SWS+3}], s96 offen")
        p.raw(f"buffer_load_dwordx4 v[{vt+16}:{vt+19}], v{vt+8}, s[{SWS}:{SWS+3}], s96 offen offset:16")
        for i in range(8):
            p.raw(f"v_mov_b32 v{vt+i}, s{80+2*i}")
        p.raw("s_waitcnt vmcnt(0)")
        p.raw(f"buffer_store_dwordx4 v[{vt+12}:{vt+15}], v{vt+8}, s[68:71], 0 offen")
        p.raw(f"buffer_store_dwordx4 v[{vt+16}:{vt+19}], v{vt+8}, s[68:71], 0 offen offset:16")
        p.raw(f"buffer_store_dwordx4 v[{vt}:{vt+3}], v{vt+8}, s[68:71], 0 offen offset:32")
        p.raw(f"buffer_store_dwordx4 v[{vt+4}:{vt+7}], v{vt+8}, s[68:71], 0 offen offset:48")
        p(f"L_nost{kidx}:")
        return
    if STAMP:
        p("s_waitcnt vmcnt(0)")
        stamp(p, 6)
        p("s_waitcnt lgkmcnt(0)")
        p(f"s_lshl_b32 s96, s2, 2\ns_add_u32 s96, s96, s3\ns_lshl_b32 s96, s96, 5\ns_add_u32 s96, s96, {WS_STAMP + kidx*65536}")
        for i in range(8): p(f"v_mov_b32 v{vt+i}, s{80+2*i}")
        p(f"""
        v_mov_b32 v{vt+8}, 0
        buffer_store_dwordx4 v[{vt}:{vt+3}], v{vt+8}, s[{SWS}:{SWS+3}], s96 offen
        buffer_store_dwordx4 v[{vt+4}:{vt+7}], v{vt+8}, s[{SWS}:{SWS+3}], s96 offen offset:16
        """)

def head(tag):
    p = Prog()
    p("s_cmp_ge_u32 s2, 256")
    p(f"s_cbranch_scc1 L_end_{tag}")
    if STAMP:
        for i in range(80, 96): p(f"s_mov_b32 s{i}, 0")
    stamp(p, 0)
    if STAMP: p("s_getreg_b32 s90, hwreg(HW_REG_XCC_ID)")
    p("""
    s_load_dwordx16 s[16:31], s[0:1], 0
    s_load_dwordx8 s[32:39], s[0:1], 64
    s_load_dwordx2 s[14:15], s[0:1], 96
    """)
    p(f"""
    v_and_b32 v{V_LANE}, 63, v0
    v_lshrrev_b32 v{V_T0}, 6, v0
    v_lshrrev_b32 v{V_G}, 4, v{V_LANE}
    v_readfirstlane_b32 s79, v{V_T0}
    v_and_b32 v{V_I16}, 15, v0
    v_bfe_u32 v{V_RR}, v0, 2, 2
    v_and_b32 v{V_CC}, 3, v0
    v_lshlrev_b32 v{V_L16}, 4, v{V_LANE}
    s_and_b32 s3, s79, 3
    s_and_b32 s4, s2, 7
    s_lshr_b32 s5, s2, 3
    s_lshr_b32 s6, s4, 2
    s_and_b32 s7, s4, 3
    s_lshr_b32 s8, s5, 2
    s_and_b32 s9, s5, 3
    """)
    p("s_waitcnt lgkmcnt(0)")
    p("s_cmp_eq_u32 s6, 0")
    if tag == "k1":
        srd_sel(p, SX, 16, 26, 983040)
        srd_sel(p, SK, 18, 28, 6291456)
        srd_sel(p, SV, 20, 30, 6291456)
        srd_sel(p, SWQ, 22, 32, 5242880)
    srd_sel(p, SWO, 24, 34, 5242880)
    srd(p, SWS, 14, 15, 0x10000000)
    if tag == "k2": srd(p, SOUT, 36, 37, 16*48*1280*2)
    p("""
    s_lshl_b32 s16, s7, 3
    s_add_u32 s16, s16, s8
    s_lshl_b32 s17, s9, 1
    s_lshr_b32 s10, s8, 2
    s_add_u32 s17, s17, s10
    s_and_b32 s18, s8, 3
    """)
    p("s_cmp_ge_u32 s79, 4")
    p(f"s_cbranch_scc1 L_loader_{tag}")
    return p

def k1():
    NSL = 4
    LX = 65536
    hd = head("k1")
    p = Prog()
    V_XR = 11; V_TR = 13; V_TV = 21; V_KR = 29
    T3 = 37
    FR = 40; ACC = 136; TMP = 232
    if env("CODEPF", "1") == "1":
        p("s_getpc_b64 s[30:31]")
        p("L_pc0:")
        p("s_mov_b32 s10, (L_code_end - L_pc0 - 4)")
        p(f"v_lshlrev_b32 v{TMP}, 7, v{V_LANE}")
        p(f"s_lshl_b32 s11, s3, 13")
        p(f"v_add_u32 v{TMP}, s11, v{TMP}")
        for i in range(NCPF):
            p(f"v_add_u32 v{TMP+1}, {i*32768}, v{TMP}")
            p(f"v_min_u32 v{TMP+1}, s10, v{TMP+1}")
            p(f"global_load_dword v{TMP+2+i}, v{TMP+1}, s[30:31]")
    p(f"""
    s_mul_i32 s10, s3, 24576
    s_add_u32 s77, s10, {LX}
    s_lshl_b32 s22, s9, 2
    s_add_u32 s22, s22, s3
    v_and_b32 v{V_T0}, 1, v{V_G}
    v_lshlrev_b32 v{V_T0}, 2, v{V_T0}
    v_or_b32 v{V_F}, v{V_RR}, v{V_T0}
    v_lshrrev_b32 v{V_T0}, 1, v{V_I16}
    v_xor_b32 v{V_T0}, v{V_T0}, v{V_G}
    v_lshlrev_b32 v{V_T1}, 7, v{V_I16}
    v_add_u32 v{V_T1}, s77, v{V_T1}
    v_lshl_add_u32 v{V_XR}, v{V_T0}, 4, v{V_T1}
    v_xor_b32 v{V_T0}, 4, v{V_T0}
    v_lshl_add_u32 v{V_XR+1}, v{V_T0}, 4, v{V_T1}
    v_lshl_add_u32 v{V_T0}, v{V_G}, 3, v{V_RR}
    v_lshlrev_b32 v{V_T0}, 8, v{V_T0}
    v_lshl_add_u32 v{V_T0}, v{V_CC}, 3, v{V_T0}
    v_lshl_add_u32 v{V_T1}, v{V_G}, 2, v{V_RR}
    v_lshlrev_b32 v{V_T1}, 8, v{V_T1}
    v_lshl_add_u32 v{V_T1}, v{V_CC}, 3, v{V_T1}
    v_add_u32 v{V_T1}, s77, v{V_T1}
    """)
    for t in range(8):
        p(f"""
        v_xor_b32 v{TMP}, {t}, v{V_F}
        v_lshl_add_u32 v{V_TR+t}, v{TMP}, 5, v{V_T0}
        v_lshl_add_u32 v{V_TV+t}, v{TMP}, 5, v{V_T1}
        """)
    p(f"""
    v_lshrrev_b32 v{V_T0}, 1, v{V_G}
    v_xor_b32 v{V_T0}, v{V_T0}, v{V_I16}
    v_and_b32 v{V_T1}, 1, v{V_G}
    v_lshlrev_b32 v{V_T1}, 3, v{V_T1}
    v_lshl_add_u32 v{V_T1}, v{V_I16}, 8, v{V_T1}
    v_add_u32 v{V_T1}, s77, v{V_T1}
    """)
    for j in range(8):
        p(f"""
        v_xor_b32 v{TMP}, {2*j}, v{V_T0}
        v_lshl_add_u32 v{V_KR+j}, v{TMP}, 4, v{V_T1}
        """)
    p(f"""
    s_mul_i32 s10, s6, 48
    s_mul_i32 s11, s22, 3
    s_add_u32 s10, s10, s11
    s_lshl_b32 s10, s10, 7
    s_lshl_b32 s11, s16, 2
    s_add_u32 s10, s10, s11
    s_lshl_b32 s24, s10, 10
    s_add_u32 s25, s24, 131072
    s_add_u32 s26, s24, 262144
    s_mov_b32 s98, {f32bits(SCALE_LOG2E)}
    """)
    if TOUCH:
        p(f"v_mov_b32 v{TMP+8}, 0")
        for u in range(3):
            p(f"buffer_load_dword v{TMP+9+u}, v{TMP+8}, s[{SWS}:{SWS+3}], s{24+u} offen")
    def run(items):
        for x in items:
            if callable(x): x()
            else: p(x)
    def reads(s):
        c, ks = s // 2, s % 2
        it = []
        fb = FR + (s % 2) * 44
        for u in range(3):
            it.append(f"ds_read_b128 {vr(fb + 32 + u*4)}, v{V_XR + ks} offset:{(c % NSL)*6144 + u*2048}")
        off0 = (c % NSL) * 16384 + ks * 8192
        for t in range(8):
            for hf in range(2):
                it.append(f"ds_read_b64_tr_b16 {vr(fb + t*4 + 2*hf, 2)}, v{V_TR+t} offset:{off0 + hf*1024}")
        return it
    def mfmas(s, order_u=False):
        it = []
        fb = FR + (s % 2) * 44
        idx = [(t, u) for u in range(3) for t in range(8)] if order_u else [(t, u) for t in range(8) for u in range(3)]
        for t, u in idx:
            a = ACC + (t*3+u)*4
            c = "0" if s == 0 else vr(a)
            it.append(f"v_mfma_f32_16x16x32_bf16 {vr(a)}, {vr(fb + t*4)}, {vr(fb + 32 + u*4)}, {c}")
        return it
    def KF(i): return 40 + 4*i if i < 11 else 128
    def QF(i): return 84 + 4*i if i < 11 else 132
    kreads = [f"ds_read_b64 {vr(KF(kt*4+T) + 2*hf, 2)}, v{V_KR + 2*T + hf} offset:{12288 + kt*4096}" for kt in range(3) for T in range(4) for hf in range(2)]
    p("s_barrier")
    stamp(p, 1)
    run(reads(0))
    for s in range(20):
        if s % 2 == 1:
            p.wait_lg(0)
            p("s_barrier")
        side = reads(s + 1) if s < 19 else []
        interleave(p, mfmas(s, order_u=(s == 19)), side, ratio=1)
    stamp(p, 2)
    ST = ACC
    VF = ACC + 40
    PFR = TMP
    AO = 40
    def cvtq(u):
        it = []
        for T in range(4):
            for k in range(4):
                a = ACC + ((2*T + k//2)*3 + u)*4 + 2*(k%2)
                it.append(f"v_cvt_pk_bf16_f32 v{QF(T*3+u) + k}, v{a}, v{a+1}")
        return it
    def st(u):
        it = []
        for T in range(4):
            for kt in range(3):
                d = ST + (kt*3+u)*4
                c = "0" if T == 0 else vr(d)
                it.append(f"v_mfma_f32_16x16x32_bf16 {vr(d)}, {vr(KF(kt*4+T))}, {vr(QF(T*3+u))}, {c}")
        return it
    def sm(u):
        it = []
        vals = [ST + (kt*3+u)*4 + r for kt in range(3) for r in range(4)]
        m, t2, sm_ = T3, T3+1, T3+2
        it.append(f"v_max3_f32 v{m}, v{vals[0]}, v{vals[1]}, v{vals[2]}")
        it.append(f"v_max3_f32 v{t2}, v{vals[3]}, v{vals[4]}, v{vals[5]}")
        it.append(f"v_max3_f32 v{m}, v{m}, v{vals[6]}, v{vals[7]}")
        it.append(f"v_max3_f32 v{t2}, v{t2}, v{vals[8]}, v{vals[9]}")
        it.append(f"v_max3_f32 v{m}, v{m}, v{vals[10]}, v{vals[11]}")
        it.append(f"v_max_f32 v{m}, v{m}, v{t2}")
        it += [f"v_mov_b32 v{t2}, v{m}", f"v_permlane16_swap_b32 v{m}, v{t2}", f"v_max_f32 v{m}, v{m}, v{t2}",
               f"v_mov_b32 v{t2}, v{m}", f"v_permlane32_swap_b32 v{m}, v{t2}", f"v_max_f32 v{m}, v{m}, v{t2}",
               f"v_mul_f32 v{m}, s98, v{m}"]
        for v in vals: it.append(f"v_fma_f32 v{v}, v{v}, s98, -v{m}")
        for v in vals: it.append(f"v_exp_f32 v{v}, v{v}")
        it.append(f"v_add_f32 v{sm_}, v{vals[0]}, v{vals[1]}")
        it.append(f"v_add_f32 v{t2}, v{vals[2]}, v{vals[3]}")
        for i in range(4, 12, 2):
            it.append(f"v_add_f32 v{sm_}, v{sm_}, v{vals[i]}")
            it.append(f"v_add_f32 v{t2}, v{t2}, v{vals[i+1]}")
        it.append(f"v_add_f32 v{sm_}, v{sm_}, v{t2}")
        it += [f"v_mov_b32 v{t2}, v{sm_}", f"v_permlane16_swap_b32 v{sm_}, v{t2}", f"v_add_f32 v{sm_}, v{sm_}, v{t2}",
               f"v_mov_b32 v{t2}, v{sm_}", f"v_permlane32_swap_b32 v{sm_}, v{t2}", f"v_add_f32 v{sm_}, v{sm_}, v{t2}",
               f"v_rcp_f32 v{sm_}, v{sm_}"]
        for v in vals: it.append(f"v_mul_f32 v{v}, v{v}, v{sm_}")
        for i in range(6): it.append(f"v_cvt_pk_bf16_f32 v{PFR + u*8 + i}, v{vals[2*i]}, v{vals[2*i+1]}")
        return it
    def pv(u):
        it = []
        for t in range(8):
            d = AO + (t*3+u)*4
            it.append(f"v_mfma_f32_16x16x32_bf16 {vr(d)}, {vr(VF + t*6)}, {vr(PFR + u*8)}, 0")
        for t in range(8):
            d = AO + (t*3+u)*4
            it.append(f"v_mfma_f32_16x16x16_bf16 {vr(d)}, {vr(VF + t*6 + 4, 2)}, {vr(PFR + u*8 + 4, 2)}, {vr(d)}")
        return it
    def cvto(u):
        it = []
        for T in range(4):
            r0 = AO + ((2*T)*3 + u)*4
            r1 = AO + ((2*T+1)*3 + u)*4
            it += [f"v_cvt_pk_bf16_f32 v{r0}, v{r0}, v{r0+1}", f"v_cvt_pk_bf16_f32 v{r0+1}, v{r0+2}, v{r0+3}",
                   f"v_cvt_pk_bf16_f32 v{r0+2}, v{r1}, v{r1+1}", f"v_cvt_pk_bf16_f32 v{r0+3}, v{r1+2}, v{r1+3}",
                   f"buffer_store_dwordx4 {vr(r0)}, v{V_L16}, s[{SWS}:{SWS+3}], s{24+u} offen offset:{T*1024}{O_ST}"]
        return it
    vreads = [f"ds_read_b64_tr_b16 {vr(VF + t*6 + 2*kp, 2)}, v{V_TV+t} offset:{kp*4096}" for t in range(8) for kp in range(3)]
    run(cvtq(0))
    p("s_barrier")
    stamp(p, 3)
    interleave(p, kreads, cvtq(1) + cvtq(2), ratio=2)
    run(st(0))
    s0 = sm(0)
    interleave(p, st(1) + st(2), s0, ratio=3, start=2)
    if env("SMEARLY", "0") == "1":
        run(sm(1))
        s2 = sm(2)
        run(s2[:40])
        p("s_barrier")
        stamp(p, 4)
        interleave(p, vreads, s2[40:], ratio=2)
        run(pv(0))
        interleave(p, pv(1), cvto(0), ratio=2, start=2)
        interleave(p, pv(2), cvto(1), ratio=2, start=2)
        run(cvto(2))
    else:
        p("s_barrier")
        stamp(p, 4)
        s1 = sm(1)
        interleave(p, vreads, s1[:24], ratio=1)
        interleave(p, pv(0), s1[24:], ratio=4)
        interleave(p, pv(1), sm(2) , ratio=5)
        run(cvto(0))
        interleave(p, pv(2), cvto(1), ratio=2)
        run(cvto(2))
    stamp_end(p, 0, 136)
    p("s_endpgm")
    comp = p

    p = Prog()
    p("L_loader_k1:")
    if env("PRIO", "0") != "0": p(f"s_setprio {env('PRIO', '0')}")
    p("s_cmp_ge_u32 s79, 6")
    p("s_cbranch_scc1 L_kv")
    V_DA, V_DB, V_XD, V_PF = 11, 12, 13, 16
    p(f"""
    s_and_b32 s23, s79, 1
    v_lshlrev_b32 v{V_T0}, 1, v{V_G}
    v_xor_b32 v{V_T0}, v{V_T0}, v{V_I16}
    v_lshlrev_b32 v{V_T0}, 4, v{V_T0}
    v_lshl_add_u32 v{V_DA}, v{V_G}, 13, v{V_T0}
    v_xor_b32 v{V_DB}, 0x80, v{V_DA}
    v_lshrrev_b32 v{V_T0}, 3, v{V_LANE}
    v_mul_u32_u24 v{V_T0}, 1280, v{V_T0}
    v_and_b32 v{V_T1}, 7, v{V_LANE}
    v_xor_b32 v{V_T1}, v{V_T1}, v{V_G}
    v_lshl_add_u32 v{V_XD}, v{V_T1}, 4, v{V_T0}
    v_xor_b32 v{V_T1}, 4, v{V_T1}
    v_lshl_add_u32 v{V_XD+1}, v{V_T1}, 4, v{V_T0}
    s_lshl_b32 s24, s16, 8
    s_lshl_b32 s10, s23, 18
    s_add_u32 s24, s24, s10
    s_lshl_b32 s25, s23, 13
    s_lshl_b32 s22, s9, 2
    s_lshl_b32 s10, s23, 1
    s_add_u32 s22, s22, s10
    s_mul_i32 s26, s22, 61440
    s_mul_i32 s77, s23, 49152
    s_add_u32 s77, s77, {LX}
    s_mul_i32 s10, s9, 5
    s_lshr_b32 s10, s10, 1
    s_mul_i32 s11, s8, 5
    s_lshr_b32 s11, s11, 2
    """)
    if ROTM == "2": p("s_mov_b32 s11, 0")
    if ROTM == "3": p("s_mov_b32 s10, 0")
    if ROTM == "4": p("s_lshr_b32 s11, s8, 2\ns_mul_i32 s11, s11, 1")
    p("""
    s_add_u32 s72, s10, s11
    s_cmp_ge_u32 s72, 10
    s_cselect_b32 s10, 10, 0
    s_sub_u32 s72, s72, s10
    """)
    if not ROT: p("s_mov_b32 s72, 0")
    def chunk_loads(c):
        if c > 0:
            p("s_add_u32 s72, s72, 1\ns_cmp_ge_u32 s72, 10\ns_cselect_b32 s10, 10, 0\ns_sub_u32 s72, s72, s10")
        p("s_lshl_b32 s73, s72, 19\ns_add_u32 s73, s73, s24\ns_lshl_b32 s74, s72, 7\ns_add_u32 s74, s74, s26")
        for i in range(8):
            p(f"s_add_u32 m0, s25, {(c % NSL)*16384 + i*1024}")
            p(f"s_add_u32 s97, s73, {(4*i) * 8192}")
            p(f"buffer_load_dwordx4 v{V_DA if (i % 4) < 2 else V_DB}, s[{SWQ}:{SWQ+3}], s97 offen{NT_W} lds", tag=f"c{c}")
        for ww in range(2):
            for j in range(6):
                p(f"s_add_u32 m0, s77, {ww*24576 + (c % NSL)*6144 + j*1024}")
                p(f"s_add_u32 s97, s74, {ww*61440 + j * 10240}")
                p(f"buffer_load_dwordx4 v{V_XD + j % 2}, s[{SX}:{SX+3}], s97 offen{NT_X} lds", tag=f"c{c}")
    def pf_wo():
        p(f"""
        s_lshl_b32 s10, s5, 1
        s_add_u32 s10, s10, s23
        s_mul_i32 s10, s10, {NPF*1280}
        s_mul_i32 s11, s7, {1024*1280}
        s_add_u32 s75, s10, s11
        v_lshlrev_b32 v{V_PF}, 7, v{V_LANE}
        """)
        nl = NPF * 10
        k = 0
        while nl > 0:
            n = min(64, nl)
            p(f"v_add_u32 v{V_PF+1}, {k*8192}, v{V_PF}")
            if n < 64:
                p(f"v_cmp_lt_u32 vcc, {n-1}, v{V_LANE}")
                p(f"v_cndmask_b32 v{V_PF+1}, v{V_PF+1}, -1, vcc")
            p(f"buffer_load_dword v{V_PF+4+k}, v{V_PF+1}, s[{SWO}:{SWO+3}], s75 offen{NT_PF}")
            nl -= n; k += 1
    p(f"""
    s_lshl_b32 s10, s2, 7
    s_add_u32 s10, s10, {WS_F}
    v_mov_b32 v{V_PF}, 0
    buffer_store_dword v{V_PF}, v{V_PF}, s[{SWS}:{SWS+3}], s10 offen
    """)
    for c in range(DIST): chunk_loads(c)
    for c in range(10):
        p.wait_tag(f"c{c}"); p("s_barrier")
        if c + DIST < 10: chunk_loads(c + DIST)
        if c == PFWO: pf_wo()
    p("s_barrier")
    if PFWO == 10: pf_wo()
    p("s_endpgm")
    load1 = p
    p = Prog()
    p("L_kv:")
    V_VA, V_VB, V_WR, V_KD = 11, 12, 13, 14
    RS = 32
    p(f"""
    s_and_b32 s23, s79, 1
    v_lshlrev_b32 v{V_T0}, 1, v{V_G}
    v_xor_b32 v{V_T0}, v{V_T0}, v{V_I16}
    v_lshlrev_b32 v{V_T0}, 4, v{V_T0}
    v_lshl_add_u32 v{V_VA}, v{V_G}, 8, v{V_T0}
    v_xor_b32 v{V_VB}, 0x80, v{V_VA}
    s_mul_i32 s77, s23, 49152
    s_add_u32 s77, s77, {LX}
    v_add_u32 v{V_WR}, s77, v{V_L16}
    v_xor_b32 v{V_T0}, v{V_G}, v{V_I16}
    v_lshlrev_b32 v{V_T0}, 4, v{V_T0}
    v_lshl_add_u32 v{V_KD}, v{V_G}, 8, v{V_T0}
    v_xor_b32 v{V_KD+1}, 0x40, v{V_KD}
    v_xor_b32 v{V_KD+2}, 0x80, v{V_KD}
    v_xor_b32 v{V_KD+3}, 0xc0, v{V_KD}
    s_lshl_b32 s22, s9, 2
    s_lshl_b32 s10, s23, 1
    s_add_u32 s22, s22, s10
    s_lshl_b32 s10, s22, 5
    s_add_u32 s10, s10, s16
    s_mul_i32 s24, s10, 12288
    s_add_u32 s25, s24, 4096
    s_add_u32 s26, s24, 8192
    s_add_u32 s27, s24, 393216
    s_add_u32 s28, s27, 4096
    s_add_u32 s29, s27, 8192
    """)
    kv = []
    for ww in range(2):
        kv += [f"buffer_load_dwordx4 {vr(RS + ww*96 + i*4)}, v{V_KD + i % 4}, s[{SK}:{SK+3}], s{24 + 3*ww + i//4} offen offset:{(i%4)*1024}{NT_KV}" for i in range(12)]
    for ww in range(2):
        kv += [f"buffer_load_dwordx4 {vr(RS + ww*96 + 48 + i*4)}, v{V_VA if i % 2 == 0 else V_VB}, s[{SV}:{SV+3}], s{24 + 3*ww + i//4} offen offset:{(i%4)*1024}{NT_KV}" for i in range(12)]
    nb = KV_END - KV_START
    per = (len(kv) + nb - 1) // nb
    for c in range(-1, 11):
        if c >= 0: p("s_barrier")
        if c >= KV_START:
            for x in kv[:per]: p(x)
            kv = kv[per:]
    for x in kv: p(x)
    for ww in range(2):
        for i in range(12):
            p(f"ds_write_b128 v{V_WR}, {vr(RS + ww*96 + i*4)} offset:{ww*24576 + 12288 + i*1024}")
    p.wait_lg(0)
    p("s_barrier")
    for ww in range(2):
        for i in range(12):
            p(f"ds_write_b128 v{V_WR}, {vr(RS + ww*96 + 48 + i*4)} offset:{ww*24576 + i*1024}")
    p.wait_lg(0)
    p("s_barrier")
    p("L_end_k1:")
    p("s_endpgm")
    load2 = p
    for q in (hd, comp, load1, load2): q.finalize()
    hd.ins = hd.ins + comp.ins + load1.ins + load2.ins
    return hd

def k2():
    NS = 5
    p = Prog()
    p("s_cmp_ge_u32 s2, 240")
    p("s_cbranch_scc1 L_end_k2")
    if STAMP:
        for i in range(80, 96): p(f"s_mov_b32 s{i}, 0")
    stamp(p, 0)
    p("""
    s_load_dwordx2 s[24:25], s[0:1], 32
    s_load_dwordx2 s[34:35], s[0:1], 72
    s_load_dwordx2 s[36:37], s[0:1], 80
    s_load_dwordx2 s[14:15], s[0:1], 96
    """)
    if STAMP: p("s_load_dwordx2 s[38:39], s[0:1], 88")
    p(f"""
    v_and_b32 v{V_LANE}, 63, v0
    v_lshrrev_b32 v{V_T0}, 6, v0
    v_lshrrev_b32 v{V_G}, 4, v{V_LANE}
    v_readfirstlane_b32 s79, v{V_T0}
    v_and_b32 v{V_I16}, 15, v0
    v_lshlrev_b32 v{V_L16}, 4, v{V_LANE}
    s_and_b32 s4, s2, 7
    s_lshr_b32 s5, s2, 3
    s_lshr_b32 s6, s4, 2
    s_and_b32 s7, s4, 3
    s_mul_i32 s17, s5, 13
    s_lshr_b32 s17, s17, 6
    s_mul_i32 s10, s17, 5
    s_sub_u32 s18, s5, s10
    s_and_b32 s3, s79, 3
    """)
    p("s_waitcnt lgkmcnt(0)")
    p("s_cmp_eq_u32 s6, 0")
    srd_sel(p, SWO, 24, 34, 5242880)
    srd(p, SWS, 14, 15, 0x10000000)
    srd(p, SOUT, 36, 37, 16*48*1280*2)
    p("s_cmp_ge_u32 s79, 4")
    p("s_cbranch_scc1 L_loader_k2")
    hd = p
    p = Prog()
    V_A = 11
    V_B = 23
    V_OUT = 26
    FR2 = 32; ACC2 = 96; D = 160
    k2pf = []
    if NPF < 16:
        tot = (1024 - 64*NPF) * 10
        per = (tot + 119) // 120
        p(f"""
        s_lshl_b32 s10, s5, 2
        s_add_u32 s10, s10, s3
        s_lshl_b32 s10, s10, 7
        s_mul_i32 s11, s7, {1024*1280}
        s_add_u32 s10, s10, s11
        s_add_u32 s10, s10, {64*NPF*1280}
        s_sub_u32 s11, {tot*128}, s10
        s_add_u32 s11, s11, {64*NPF*1280}
        s_mul_i32 s12, s7, {1024*1280}
        s_add_u32 s11, s11, s12
        v_mul_u32_u24 v{D}, {120*128}, v{V_LANE}
        """)
        k = 0
        p("s_mov_b32 s78, s10")
        while per > 0:
            p(f"v_add_u32 v{D+8+k}, {k*64*120*128}, v{D}")
            p(f"v_cmp_le_u32 vcc, s11, v{D+8+k}")
            p(f"v_cndmask_b32 v{D+8+k}, v{D+8+k}, -1, vcc")
            k2pf.append(f"buffer_load_dword v{D+2+k}, v{D+8+k}, s[{SWO}:{SWO+3}], s78 offen")
            per -= 64; k += 1
    p(f"""
    v_bfe_u32 v{V_RR}, v0, 2, 2
    v_and_b32 v{V_CC}, 3, v0
    s_lshr_b32 s10, s3, 1
    s_and_b32 s11, s3, 1
    v_and_b32 v{V_T0}, 1, v{V_G}
    v_lshlrev_b32 v{V_T0}, 2, v{V_T0}
    v_or_b32 v{V_F}, v{V_RR}, v{V_T0}
    v_lshl_add_u32 v{V_T0}, v{V_G}, 2, v{V_RR}
    v_lshlrev_b32 v{V_T0}, 8, v{V_T0}
    v_lshl_add_u32 v{V_T0}, v{V_CC}, 3, v{V_T0}
    s_lshl_b32 s13, s11, 2
    """)
    for tt in range(4):
        p(f"""
        s_add_u32 s12, s13, {tt}
        v_xor_b32 v{V_T2}, s12, v{V_F}
        v_lshl_add_u32 v{V_A+tt}, v{V_T2}, 5, v{V_T0}
        v_add_u32 v{V_A+4+tt}, 0x10000, v{V_A+tt}
        v_add_u32 v{V_A+8+tt}, 0x20000, v{V_A+tt}
        """)
    p(f"""
    s_lshl_b32 s13, s10, 13
    v_add_u32 v{V_B}, s13, v{V_L16}
    v_add_u32 v{V_B+1}, 0x10000, v{V_B}
    v_add_u32 v{V_B+2}, 0x20000, v{V_B}
    v_mul_u32_u24 v{V_OUT}, 2560, v{V_I16}
    v_lshl_add_u32 v{V_OUT}, v{V_G}, 3, v{V_OUT}
    s_mul_i32 s13, s6, 30
    s_add_u32 s13, s13, s5
    s_lshl_b32 s13, s13, 4
    s_add_u32 s13, s13, s3
    s_lshl_b32 s27, s13, 14
    s_add_u32 s27, s27, {WS_P}
    s_lshl_b32 s12, s7, 16
    s_add_u32 s28, s27, s12
    s_lshl_b32 s13, s17, 7
    s_lshl_b32 s12, s10, 6
    s_add_u32 s13, s13, s12
    s_mul_i32 s29, s13, 2560
    s_mul_i32 s13, s6, 1280
    s_add_u32 s29, s29, s13
    s_lshl_b32 s13, s18, 8
    s_add_u32 s29, s29, s13
    s_lshl_b32 s13, s11, 7
    s_add_u32 s29, s29, s13
    s_lshl_b32 s13, s7, 5
    s_add_u32 s29, s29, s13
    """)
    if TOUCH:
        TD = 210
        p(f"v_mov_b32 v{TD}, 0")
        p(f"buffer_load_dword v{TD+1}, v{TD}, s[{SWS}:{SWS+3}], s28 offen offset:2048")
        p(f"s_add_u32 s30, s28, 12288")
        p(f"buffer_load_dword v{TD+2}, v{TD}, s[{SWS}:{SWS+3}], s30 offen offset:2048")
        for j in range(4):
            p(f"s_lshl_b32 s30, s7, 12\ns_add_u32 s30, s30, s27\ns_add_u32 s30, s30, {j*65536}")
            p(f"buffer_load_dword v{TD+3+j}, v{TD}, s[{SWS}:{SWS+3}], s30 offen offset:2048")
        for i in range(4):
            p(f"s_add_u32 s30, s29, {i*40960}")
            p(f"buffer_load_dword v{TD+7+i}, v{TD}, s[{SOUT}:{SOUT+3}], s30 offen")
        p(f"s_mov_b32 s30, {WS_F + 32768}")
        p(f"buffer_load_dword v{TD+11}, v{TD}, s[{SWS}:{SWS+3}], s30 offen")
    def run(items):
        for x in items:
            if callable(x): x()
            else: p(x)
    def reads2(s):
        c, ks = s // 2, s % 2
        base = (c % NS) * 32768
        fb = FR2 + (s % 2) * 32
        it = []
        for u in range(4):
            off = base + (u*2 + ks) * 1024
            it.append(f"ds_read_b128 {vr(fb + 16 + u*4)}, v{V_B + off // 65536} offset:{off % 65536}")
        for tt in range(4):
            for hf in range(2):
                off = base + 16384 + ks*8192 + hf*4096
                it.append(f"ds_read_b64_tr_b16 {vr(fb + tt*4 + 2*hf, 2)}, v{V_A + 4*(off // 65536) + tt} offset:{off % 65536}")
        return it
    def mfmas2(s):
        fb = FR2 + (s % 2) * 32
        it = []
        for tt in range(4):
            for u in range(4):
                a = ACC2 + (tt*4+u)*4
                c = "0" if s == 0 else vr(a)
                it.append(f"v_mfma_f32_16x16x32_bf16 {vr(a)}, {vr(fb + tt*4)}, {vr(fb + 16 + u*4)}, {c}")
        return it
    p("s_barrier")
    stamp(p, 1)
    run(reads2(0))
    run(k2pf)
    for s in range(32):
        if s % 2 == 1 and s < 31: p("s_barrier")
        side = reads2(s + 1) if s < 31 else []
        interleave(p, mfmas2(s), side, ratio=1)
    stamp(p, 2)
    p("s_nop 15")
    P16 = env("P16", "1") == "1"
    for q in range(4):
        p(f"s_cmp_eq_u32 s7, {q}")
        p(f"s_cbranch_scc1 L_skipq{q}")
        p(f"s_add_u32 s30, s28, {q*4096}")
        if P16:
            for i2 in range(2):
                a = ACC2 + (4*q + 2*i2)*4
                p.raw(f"v_cvt_pk_bf16_f32 v{a}, v{a}, v{a+1}")
                p.raw(f"v_cvt_pk_bf16_f32 v{a+1}, v{a+2}, v{a+3}")
                p.raw(f"v_cvt_pk_bf16_f32 v{a+2}, v{a+4}, v{a+5}")
                p.raw(f"v_cvt_pk_bf16_f32 v{a+3}, v{a+6}, v{a+7}")
                p.raw(f"buffer_store_dwordx4 {vr(a)}, v{V_L16}, s[{SWS}:{SWS+3}], s30 offen offset:{i2*1024} sc1")
        else:
            for i in range(4):
                p.raw(f"buffer_store_dwordx4 {vr(ACC2 + (4*q+i)*4)}, v{V_L16}, s[{SWS}:{SWS+3}], s30 offen offset:{i*1024} sc1")
        p(f"s_branch L_nown{q}")
        p(f"L_skipq{q}:")
        for i in range(16):
            p.raw(f"v_mov_b32 v{FR2 + i}, v{ACC2 + 16*q + i}")
        p(f"L_nown{q}:")
    p("s_waitcnt vmcnt(0)")
    stamp(p, 3)
    p("s_barrier")
    p("s_barrier")
    stamp(p, 4)
    p("s_lshl_b32 s31, s7, 12")
    p("s_add_u32 s31, s31, s27")
    nl = 2 if P16 else 4
    for jj in range(3):
        p(f"s_add_u32 s30, s7, {jj+1}\ns_and_b32 s30, s30, 3\ns_lshl_b32 s30, s30, 16\ns_add_u32 s30, s30, s31")
        for i in range(nl):
            p(f"buffer_load_dwordx4 {vr(D + (jj*4+i)*4)}, v{V_L16}, s[{SWS}:{SWS+3}], s30 offen offset:{i*1024} sc1")
    p("s_mov_b32 s13, 0xffff0000")
    for i in range(4):
        b0 = FR2 + i*4
        if P16:
            T = ACC2
            for jj in range(3):
                src = D + (jj*4 + i//2)*4 + 2*(i % 2)
                for h in range(2):
                    p(f"v_lshlrev_b32 v{T}, 16, v{src+h}")
                    p(f"v_and_b32 v{T+1}, s13, v{src+h}")
                    p(f"v_add_f32 v{b0+2*h}, v{b0+2*h}, v{T}")
                    p(f"v_add_f32 v{b0+2*h+1}, v{b0+2*h+1}, v{T+1}")
            b1 = ACC2 + 4 + 2*i
        else:
            b1, b2, b3 = [D + (j*4+i)*4 for j in range(3)]
            for r in range(4):
                p(f"v_add_f32 v{b0+r}, v{b0+r}, v{b1+r}")
                p(f"v_add_f32 v{b2+r}, v{b2+r}, v{b3+r}")
                p(f"v_add_f32 v{b0+r}, v{b0+r}, v{b2+r}")
        p(f"v_cvt_pk_bf16_f32 v{b1}, v{b0}, v{b0+1}")
        p(f"v_cvt_pk_bf16_f32 v{b1+1}, v{b0+2}, v{b0+3}")
        p(f"s_add_u32 s30, s29, {i*40960}")
        p(f"buffer_store_dwordx2 {vr(b1, 2)}, v{V_OUT}, s[{SOUT}:{SOUT+3}], s30 offen")
    stamp_end(p, 1, 60)
    p("s_endpgm")
    comp = p
    p = Prog()
    p("L_loader_k2:")
    if env("PRIO", "0") != "0": p(f"s_setprio {env('PRIO', '0')}")
    V_WA, V_WB, V_FL, V_FD = 11, 12, 16, 18
    p(f"""
    s_mul_i32 s13, s6, 48
    s_lshl_b32 s12, s17, 3
    s_add_u32 s13, s13, s12
    s_lshl_b32 s12, s3, 1
    s_add_u32 s13, s13, s12
    s_lshl_b32 s13, s13, 7
    s_lshl_b32 s12, s7, 5
    s_add_u32 s13, s13, s12
    s_lshl_b32 s24, s13, 10
    s_lshl_b32 s25, s3, 12
    """)
    R2 = int(env("R2", "1"))
    p(f"s_mul_i32 s72, s18, {R2}")
    def dma_o(c):
        slot = c % NS
        if "o" in env("SKIP2", ""): return
        p(f"s_add_u32 s73, s72, {c}\ns_and_b32 s73, s73, 15\ns_lshl_b32 s73, s73, 11\ns_add_u32 s73, s73, s24")
        for i in range(2):
            for ks in range(2):
                p(f"s_add_u32 m0, s25, {slot*32768 + (i*2+ks)*1024}")
                p(f"s_add_u32 s97, s73, {WS_O + i*131072 + ks*1024}")
                p(f"buffer_load_dwordx4 v{V_L16}, s[{SWS}:{SWS+3}], s97 offen lds", tag=f"c{c}")
    def dma_w(c):
        slot = c % NS
        if "w" in env("SKIP2", ""): return
        p(f"s_add_u32 s74, s72, {c}\ns_and_b32 s74, s74, 15\ns_mul_i32 s74, s74, {64*1280}\ns_add_u32 s74, s74, s26")
        for i in range(4):
            p(f"s_add_u32 m0, s27, {slot*32768 + i*1024}")
            p(f"s_add_u32 s97, s74, {(4*i)*1280}")
            p(f"buffer_load_dwordx4 v{V_WA if i % 2 == 0 else V_WB}, s[{SWO}:{SWO+3}], s97 offen{NT_WO} lds", tag=f"c{c}")
    dma_o(0)
    p(f"""
    v_lshlrev_b32 v{V_T0}, 1, v{V_G}
    v_xor_b32 v{V_T0}, v{V_T0}, v{V_I16}
    v_lshlrev_b32 v{V_T0}, 4, v{V_T0}
    v_mul_u32_u24 v{V_T1}, 1280, v{V_G}
    v_add_u32 v{V_WA}, v{V_T0}, v{V_T1}
    v_xor_b32 v{V_T0}, 0x80, v{V_T0}
    v_add_u32 v{V_WB}, v{V_T0}, v{V_T1}
    s_lshl_b32 s13, s7, 10
    s_lshl_b32 s12, s3, 4
    s_add_u32 s13, s13, s12
    s_mul_i32 s13, s13, 1280
    s_lshl_b32 s12, s18, 8
    s_add_u32 s26, s13, s12
    s_lshl_b32 s27, s3, 12
    s_add_u32 s27, s27, 16384
    """)
    dma_w(0)
    nxt = 1
    for c in range(1, DIST2): dma_o(c); dma_w(c); nxt += 1
    p(f"""
    s_lshl_b32 s10, s2, 7
    s_add_u32 s10, s10, {WS_F}
    v_mov_b32 v{V_FL}, s10
    s_and_b32 s10, s2, 0xfc
    s_lshl_b32 s10, s10, 7
    s_add_u32 s10, s10, {WS_F}
    v_and_b32 v{V_T0}, 3, v{V_LANE}
    v_lshlrev_b32 v{V_T0}, 7, v{V_T0}
    v_add_u32 v{V_FL+1}, s10, v{V_T0}
    """)
    for c in range(16):
        p.wait_tag(f"c{c}"); p("s_barrier")
        if nxt <= min(15, c + DIST2): dma_o(nxt); dma_w(nxt); nxt += 1
    p("s_cmp_lg_u32 s79, 4")
    p("s_cbranch_scc1 L_end_k2")
    p.raw("s_barrier")
    p.raw(f"v_mov_b32 v{V_FD}, 1")
    p.raw(f"buffer_store_dword v{V_FD}, v{V_FL}, s[{SWS}:{SWS+3}], 0 offen sc1")
    p.raw(f"s_mov_b32 s76, {SPIN_MAX}")
    p.raw("L_poll2:")
    p.raw(f"buffer_load_dword v{V_FD+1}, v{V_FL+1}, s[{SWS}:{SWS+3}], 0 offen sc1")
    p.raw("s_waitcnt vmcnt(0)")
    p.raw(f"v_cmp_ne_u32 vcc, 1, v{V_FD+1}")
    p.raw("s_nop 4")
    p.raw("s_cmp_eq_u64 vcc, 0")
    p.raw("s_cbranch_scc1 L_done2")
    p.raw(f"s_sleep {SLEEP}")
    p.raw("s_sub_u32 s76, s76, 1")
    p.raw("s_cmp_lg_u32 s76, 0")
    p.raw("s_cbranch_scc1 L_poll2")
    p.raw("L_done2:")
    p.raw("s_barrier")
    p("L_end_k2:")
    p("s_endpgm")
    p("L_code_end:")
    load = p
    for q in (hd, comp, load): q.finalize()
    hd.ins = hd.ins + comp.ins + load.ins
    return hd

def kd(name, vgpr, sgpr=100):
    return f""".amdhsa_kernel {name}
  .amdhsa_next_free_vgpr {vgpr}
  .amdhsa_next_free_sgpr {sgpr}
  .amdhsa_accum_offset {vgpr}
  .amdhsa_group_segment_fixed_size 0
  .amdhsa_kernarg_size 104
  .amdhsa_user_sgpr_count 2
  .amdhsa_user_sgpr_kernarg_segment_ptr 1
  .amdhsa_system_sgpr_workgroup_id_x 1
.end_amdhsa_kernel
"""
def build(out):
    hdr = open("cdna_kernels/" + NAME + ".s.ref").read().split("; Override launch")[0]
    s = hdr
    s += "; @launch kernel=k1_kernel grid=(256,1,1) block=(512,1,1) lds=163840\n"
    s += "; @launch kernel=k2_kernel grid=(240,1,1) block=(512,1,1) lds=163840\n"
    s += '.amdgcn_target "amdgcn-amd-amdhsa--gfx950"\n.text\n'
    for nm, f in (("k1_kernel", k1), ("k2_kernel", k2)):
        s += f".globl {nm}\n.p2align 8\n.type {nm},@function\n{nm}:\n" + f().text()
    s += '.section .rodata,"a"\n.p2align 6\n'
    s += kd("k1_kernel", 256) + ".p2align 6\n" + kd("k2_kernel", 256)
    open(out, "w").write(s)
if __name__ == "__main__":
    if len(sys.argv) > 2 and sys.argv[2] == "stamp": STAMP = True
    build(sys.argv[1])
```
